```python
import torch

def _softmax(x, axis=-1):
    return torch.softmax(x, dim=axis)
def _gelu(x):
    return torch.nn.functional.gelu(x, approximate="tanh")
def _silu(x):
    return torch.nn.functional.silu(x)
def _sigmoid(x):
    return torch.sigmoid(x)
def _layernorm(x, axis=-1, eps=1e-5):
    m = x.mean(dim=axis, keepdim=True)
    v = x.var(dim=axis, keepdim=True, unbiased=False)
    return (x - m) / torch.sqrt(v + eps)
def _scatter_add(tgt, idx, src, axis=0):
    return tgt.clone().index_add_(axis, idx, src)
def _segment_sum(src, seg, n):
    out = torch.zeros((n,) + src.shape[1:], dtype=src.dtype)
    return out.index_add_(0, seg, src)
def _pad(x, pw):
    flat = tuple(v for pair in reversed(pw) for v in pair)
    return torch.nn.functional.pad(x, flat)

kernel_name = 'gated_mix__mha_block__geglu_ffn__prompt'

def setup_inputs():

    _w = (lambda a: (lambda t: t.to(torch.bfloat16) if t.is_floating_point() else t)(torch.as_tensor(a)))
    def _A_setup():
        B, S, D, H = 1, 2048, 512, 32
        return {
            "x": _w((lambda *s: torch.randn(*s, dtype=torch.bfloat16) * 0.05)(B, S, D)),
            "wqkv": _w((lambda *s: torch.randn(*s, dtype=torch.bfloat16) * 0.8)(D, 3 * D)),
            "wo": _w((lambda *s: torch.randn(*s, dtype=torch.bfloat16) * 0.05)(D, D)),
        }
    _A_in = _A_setup()

    def _B_setup():
        B, S, D, F = 1, 2048, 512, 1376
        return {
            "x": _w((lambda *s: torch.randn(*s, dtype=torch.bfloat16) * 0.05)(B, S, D)),
            "w_gate": _w((lambda *s: torch.randn(*s, dtype=torch.bfloat16) * 0.1)(D, F)),
            "w_up": _w((lambda *s: torch.randn(*s, dtype=torch.bfloat16) * 0.1)(D, F)),
            "w_down": _w((lambda *s: torch.randn(*s, dtype=torch.bfloat16) * 0.1)(F, D)),
        }
    _B_in = _B_setup()

    return {
        "A_x": _A_in["x"],
        "A_wqkv": _A_in["wqkv"],
        "A_wo": _A_in["wo"],
        "B_x": _B_in["x"],
        "B_w_gate": _B_in["w_gate"],
        "B_w_up": _B_in["w_up"],
        "B_w_down": _B_in["w_down"],
        "gate_w": _w((lambda *s: torch.randn(*s, dtype=torch.bfloat16) * 0.05)(512) * 16.0),
    }

def reference(A_x, A_wqkv, A_wo, B_x, B_w_gate, B_w_up, B_w_down, gate_w):
    def _A_ref(x, wqkv, wo):
        B, S, D = x.shape
        H = 32
        Dh = D // H
        qkv = (lambda x, *d: x.permute(*d))((x @ wqkv).reshape(B, S, 3, H, Dh), 2, 0, 3, 1, 4)
        q, k, v = qkv[0], qkv[1], qkv[2]
        scores = torch.einsum("bhqd,bhkd->bhqk", q, k) * (Dh ** -0.5)
        p = _softmax(scores, axis=-1)
        o = torch.einsum("bhqk,bhkd->bhqd", p, v)
        return (lambda x, *d: x.permute(*d))(o, 0, 2, 1, 3).reshape(B, S, D) @ wo

    def _B_ref(x, w_gate, w_up, w_down):
        return (_gelu(x @ w_gate) * (x @ w_up)) @ w_down

    x = A_x
    g = _sigmoid((x * gate_w).sum(-1, keepdims=True))
    a = _A_ref(x, A_wqkv, A_wo)
    b = _B_ref(x, B_w_gate, B_w_up, B_w_down)
    return g * a + (1 - g) * b
```

```python
import re

class Asm:
    def __init__(self):
        self.L = []
        self.uid = 0
    def __call__(self, s):
        for line in s.split("\n"):
            line = line.strip()
            if line:
                self.L.append(line)
    def label(self, base):
        self.uid += 1
        return f"{base}_{self.uid}"
    def text(self):
        out = []
        for l in self.L:
            if l.endswith(":") or l.startswith(".") or l.startswith(";"):
                out.append(l)
            else:
                out.append("    " + l)
        return "\n".join(out) + "\n"

def vr(a, n=1):
    return f"v{a}" if n == 1 else f"v[{a}:{a+n-1}]"
def sr(a, n=1):
    return f"s{a}" if n == 1 else f"s[{a}:{a+n-1}]"

_REG = re.compile(r"\b([vsa])(\d+)\b|\b([vsa])\[(\d+):(\d+)\]|\b(vcc|exec|m0|vcc_lo|vcc_hi|exec_lo|exec_hi|scc)\b")
def regs_of(op):
    out = set()
    for m in _REG.finditer(op):
        if m.group(1):
            out.add((m.group(1), int(m.group(2))))
        elif m.group(3):
            for i in range(int(m.group(4)), int(m.group(5)) + 1):
                out.add((m.group(3), i))
        else:
            out.add((m.group(6).split("_")[0], 0))
    return out

TRANS = ("v_exp_", "v_log_", "v_rcp_", "v_rsq_", "v_sqrt_", "v_sin_", "v_cos_")
class Ins:
    def __init__(self, text, idx):
        self.text = text; self.idx = idx
        t = text.split(";")[0].strip()
        p = t.split(None, 1)
        self.op = p[0]
        ops = [o.strip() for o in p[1].split(",")] if len(p) > 1 else []
        self.ops = ops
        op = self.op
        self.mfma = op.startswith("v_mfma")
        self.valu = op.startswith("v_") and not self.mfma
        self.trans = op.startswith(TRANS)
        self.vmem = op.startswith(("buffer_", "global_"))
        self.ds = op.startswith("ds_")
        self.salu = op.startswith("s_")
        self.w = set(); self.r = set()
        self.A = self.B = self.C = set()
        if self.mfma:
            self.w = regs_of(ops[0]); self.A = regs_of(ops[1]); self.B = regs_of(ops[2]); self.C = regs_of(ops[3])
            self.r = self.A | self.B | self.C
            self.passes = 8 if "32x32x16" in op else 4
        elif self.valu:
            if op.startswith("v_cmp"):
                self.w = regs_of(ops[0]); rest = ops[1:]
                if op.startswith("v_cmpx"): self.w |= {("exec", 0)}
            elif "permlane" in op and "swap" in op:
                self.w = regs_of(ops[0]) | regs_of(ops[1]); rest = ops
            elif op.startswith(("v_add_co", "v_sub_co", "v_addc_co", "v_subb_co")):
                self.w = regs_of(ops[0]) | regs_of(ops[1]); rest = ops[2:]
            else:
                self.w = regs_of(ops[0]); rest = ops[1:]
                if op.startswith(("v_fmac", "v_mac", "v_dot2c")): rest = ops
            for o in rest: self.r |= regs_of(o)
        elif self.vmem:
            allr = set()
            for o in ops: allr |= regs_of(o)
            self.lds = bool(re.search(r"\blds\b", t))
            if "load" in op and not self.lds:
                self.w = regs_of(ops[0])
                for o in ops[1:]: self.r |= regs_of(o)
            elif "atomic" in op and "sc0" in t:
                self.w = regs_of(ops[0]); self.r = allr
            else:
                self.r = allr
            self.store_data = regs_of(ops[0]) if ("store" in op and op.startswith("buffer_")) else set()
        elif self.ds:
            if "read" in op or "_rtn" in op or "permute" in op or "swizzle" in op:
                self.w = regs_of(ops[0])
                for o in ops[1:]: self.r |= regs_of(o)
            else:
                for o in ops: self.r |= regs_of(o)
        elif self.salu:
            if op.startswith(("s_cmp", "s_cbranch", "s_branch", "s_waitcnt", "s_nop", "s_barrier", "s_endpgm", "s_setprio", "s_sleep", "s_bitcmp")):
                for o in ops: self.r |= regs_of(o)
            else:
                if ops: self.w = regs_of(ops[0])
                for o in ops[1:]: self.r |= regs_of(o)
                if "saveexec" in op: self.w |= {("exec", 0)}
        self.states = int(ops[0]) + 1 if op == "s_nop" else 1

def check_hazards(lines):
    ins = []; labels = {}
    for l in lines:
        t = l.split(";")[0].strip()
        if not t or t.startswith("."): continue
        if t.endswith(":"):
            labels[t[:-1]] = len(ins); continue
        ins.append(Ins(t, len(ins)))
    def succ(i):
        I = ins[i]
        if I.op == "s_endpgm": return []
        if I.op == "s_branch": return [labels[I.ops[0]]]
        s = [i + 1] if i + 1 < len(ins) else []
        if I.op.startswith("s_cbranch"): s.append(labels[I.ops[0]])
        return s
    V = lambda S: {x for x in S if x[0] in "va"}
    Sg = lambda S: {x for x in S if x[0] in ("s", "vcc")}
    def need(P, Cn):
        n = 0; why = ""
        def up(k, w):
            nonlocal n, why
            if k > n: n = k; why = w
        if P.valu:
            pw = V(P.w)
            if Cn.mfma and (pw & Cn.r): up(2, "valu->mfma")
            if P.trans and Cn.valu and not Cn.trans and (pw & Cn.r): up(1, "trans->valu")
            if P.trans and (Cn.vmem or Cn.ds) and (pw & Cn.r): up(1, "trans->mem")
            if Cn.op.startswith(("v_readfirstlane", "v_readlane")) and (pw & Cn.r): up(1, "valu->readlane")
            if ("permlane" in Cn.op or "dpp" in Cn.text or "row_" in Cn.text or "quad_perm" in Cn.text) and (pw & Cn.r): up(2, "valu->permlane/dpp")
            sw = Sg(P.w)
            if Cn.valu and (sw & Cn.r): up(2, "valu sgpr->valu")
            if Cn.op.startswith("v_cndmask") and ("vcc", 0) in sw: up(2, "vcc->cndmask")
            if Cn.vmem and (sw & Cn.r): up(5, "valu sgpr->vmem")
            if ("exec", 0) in P.w and Cn.mfma: up(4, "valu exec->mfma")
        if P.mfma:
            big = 12 if P.passes == 8 else 8
            if Cn.mfma:
                if P.w & (Cn.A | Cn.B): up(big, "mfma D->A/B")
                if (P.w & Cn.C) and not (P.w == Cn.C and P.passes == Cn.passes): up(big - 2, "mfma D->C overlap")
            elif Cn.valu or Cn.vmem or Cn.ds:
                if P.w & (Cn.r | Cn.w): up(big, "mfma D->use")
                if Cn.valu and (V(P.C) & Cn.w): up(7 if P.passes == 8 else 3, "mfma C war")
        if P.salu and ("m0", 0) in P.w and Cn.vmem and getattr(Cn, "lds", False): up(1, "m0->dma")
        if P.vmem and len(getattr(P, "store_data", ())) >= 3 and Cn.valu and (P.store_data & Cn.w): up(2, "store data war")
        return n, why
    errs = []
    for P in ins:
        if not (P.valu or P.mfma or P.vmem or (P.salu and ("m0", 0) in P.w)): continue
        seen = {}
        stack = [(s, 0) for s in succ(P.idx)]
        while stack:
            i, d = stack.pop()
            if d >= 12 or seen.get(i, 99) <= d: continue
            seen[i] = d
            n, why = need(P, ins[i])
            if n > d: errs.append(f"{why}: need {n} have {d}: [{P.idx}] {P.text}  ->  [{i}] {ins[i].text}")
            for s in succ(i): stack.append((s, d + ins[i].states))
    return errs
```

```python
import sys, math, struct
from asmlib import *

NAME = "gated_mix__mha_block__geglu_ffn__prompt"
WS_Q = 0; WS_K = 2 << 20; WS_V = 4 << 20; WS_O = 6 << 20; WS_H = 8 << 20; WS_P = 14 << 20; WS_G = 16 << 20
WS_SIZE = (16 << 20) + 8192
def f32(x): return struct.unpack("<I", struct.pack("<f", x))[0]
LOG2E = 1.4426950408889634
MFMA = "v_mfma_f32_32x32x16_bf16"

def srd(A, d, b, size):
    A(f"s_mov_b32 s{d}, s{b}\ns_mov_b32 s{d+1}, s{b+1}\ns_mov_b32 s{d+2}, {size}\ns_mov_b32 s{d+3}, 0x20000")

def khead(A, name):
    A(f".globl {name}\n.p2align 8\n.type {name},@function\n{name}:")

def kdesc(A, name, vgpr, sgpr=96):
    acc = (vgpr + 3) // 4 * 4
    A(".p2align 6")
    A(f".amdhsa_kernel {name}")
    for l in (f".amdhsa_next_free_vgpr {vgpr}", f".amdhsa_next_free_sgpr {sgpr}", f".amdhsa_accum_offset {acc}",
              ".amdhsa_group_segment_fixed_size 0", ".amdhsa_kernarg_size 88", ".amdhsa_user_sgpr_count 2",
              ".amdhsa_user_sgpr_kernarg_segment_ptr 1", ".amdhsa_system_sgpr_workgroup_id_x 1"):
        A(l)
    A(".end_amdhsa_kernel")

K1_SLOT = 28672; K1_NS = 5; K1_GW = K1_SLOT * K1_NS; K1_LDS = K1_GW + 1024
def gen_k1(A, name):
    khead(A, name)
    ex = A.label("k1_exit"); hl = A.label("k1_helper")
    A(f"s_cmp_ge_u32 s2, 256\ns_cbranch_scc1 {ex}")
    A("s_load_dwordx4 s[4:7], s[0:1], 0\ns_load_dwordx2 s[8:9], s[0:1], 56\ns_load_dwordx2 s[10:11], s[0:1], 80")
    A("v_readfirstlane_b32 s3, v0\nv_and_b32 v1, 63, v0\ns_lshr_b32 s3, s3, 6")
    A("""s_and_b32 s30, s2, 7
    s_lshr_b32 s31, s2, 3
    s_and_b32 s12, s30, 1
    s_lshl_b32 s12, s12, 3
    s_and_b32 s33, s31, 7
    s_add_u32 s12, s12, s33
    s_lshr_b32 s13, s30, 1
    s_lshl_b32 s13, s13, 2
    s_lshr_b32 s34, s31, 3
    s_add_u32 s13, s13, s34
    s_lshl_b32 s34, s34, 1
    s_add_u32 s14, s33, s34
    s_and_b32 s15, s3, 3""")
    A("v_and_b32 v5, 31, v1\nv_lshrrev_b32 v6, 5, v1")
    A("""v_lshrrev_b32 v7, 1, v5
    v_and_b32 v7, 7, v7
    v_xor_b32 v7, v7, v6
    v_lshlrev_b32 v7, 4, v7
    v_lshlrev_b32 v8, 7, v5
    v_add_u32 v7, v7, v8
    s_lshl_b32 s32, s15, 12
    v_add_u32 v16, s32, v7""")
    for ks in range(1, 4): A(f"v_xor_b32 v{16+ks}, {32*ks}, v16")
    for j in (1, 2):
        for ks in range(4): A(f"v_add_u32 v{16+4*j+ks}, {j*2*K1_SLOT}, v{16+ks}")
    A("s_waitcnt lgkmcnt(0)")
    srd(A, 16, 4, 2048 * 1024); srd(A, 20, 6, 512 * 3072); srd(A, 24, 10, WS_SIZE); srd(A, 36, 8, 1024)
    A(f"s_cmp_ge_u32 s3, 4\ns_cbranch_scc1 {hl}")
    waits = [4, 3, 3, 3, 3, 2, 1, 0]
    A("""v_lshrrev_b32 v8, 3, v1
    v_lshlrev_b32 v8, 10, v8
    v_lshrrev_b32 v9, 4, v1
    v_and_b32 v10, 7, v1
    v_xor_b32 v9, v9, v10
    v_lshlrev_b32 v9, 4, v9
    v_add_u32 v2, v8, v9
    v_xor_b32 v3, 64, v2
    s_lshl_b32 s40, s12, 17
    s_lshl_b32 s41, s15, 15
    s_add_u32 s40, s40, s41""")
    def xload(c):
        slot = c % K1_NS
        A(f"s_add_u32 s42, s14, {c}\ns_and_b32 s42, s42, 7\ns_lshl_b32 s42, s42, 7\ns_add_u32 s42, s42, s40")
        for i in range(4):
            A(f"s_add_u32 m0, s32, {slot*K1_SLOT + i*1024}")
            if i: A("s_add_u32 s42, s42, 8192")
            else: A("s_nop 0")
            A(f"buffer_load_dwordx4 v{2 + (i&1)}, s[16:19], s42 offen lds")
    for c in range(K1_NS): xload(c)
    A("""v_and_b32 v8, 15, v1
    v_lshrrev_b32 v9, 2, v8
    v_lshl_add_u32 v9, v6, 3, v9
    v_mul_u32_u24 v9, 192, v9
    v_and_b32 v10, 3, v1
    v_lshl_add_u32 v9, v10, 3, v9
    v_bfe_u32 v10, v1, 4, 1
    v_lshl_add_u32 v9, v10, 5, v9
    v_add_u32 v28, 16384, v9""")
    A(f"v_add_u32 v29, {2*K1_SLOT}, v28\nv_add_u32 v30, {4*K1_SLOT}, v28")
    ACC = 64; FR = 32
    def reads(c, ks, b):
        slot = c % K1_NS; j = slot // 2; so = (slot % 2) * K1_SLOT
        f = FR + 16 * b
        A(f"ds_read_b128 {vr(f,4)}, v{16+4*j+ks} offset:{so}")
        for t in range(3):
            for p in range(2):
                A(f"ds_read_b64_tr_b16 {vr(f+4+4*t+2*p,2)}, v{28+j} offset:{so + (16*ks+4*p)*192 + 64*t}")
    def mf(b, first):
        f = FR + 16 * b
        for t in range(3):
            acc = vr(ACC + 16 * t, 16); c = "0" if first else acc
            if t < 2: A(f"{MFMA} {acc}, {vr(f+4+4*t,4)}, {vr(f,4)}, {c}")
            else:     A(f"{MFMA} {acc}, {vr(f,4)}, {vr(f+4+4*t,4)}, {c}")
    for c in range(8):
        A(f"s_waitcnt vmcnt({4*waits[c]})\ns_barrier")
        reads(c, 0, 0)
        if 1 <= c <= 3: xload(c + 4)
        for ks in range(4):
            if ks < 3:
                reads(c, ks + 1, (ks + 1) & 1); A("s_waitcnt lgkmcnt(7)")
            else:
                A("s_waitcnt lgkmcnt(0)")
            mf(ks & 1, c == 0 and ks == 0)
    A(f"s_mov_b32 s44, {hex(f32(0.25*LOG2E))}\ns_cmp_lt_u32 s13, 8\ns_cselect_b32 s44, s44, 1.0")
    A("s_lshl_b32 s45, s12, 2\ns_add_u32 s45, s45, s15")
    A("s_lshl_b32 s46, s13, 18\ns_lshl_b32 s47, s45, 10\ns_add_u32 s46, s46, s47")
    A("s_lshl_b32 s48, s13, 17\ns_add_u32 s48, s48, s47")
    A(f"s_add_u32 s48, s48, {WS_V}")
    A("v_lshlrev_b32 v2, 4, v1")
    A("""v_and_b32 v8, 15, v1
    v_lshl_add_u32 v8, v6, 4, v8
    v_lshlrev_b32 v3, 4, v8
    v_bfe_u32 v10, v1, 4, 1
    v_lshl_add_u32 v3, v10, 16, v3""")
    A("s_nop 4")
    for t in range(2):
        for r in range(16): A(f"v_mul_f32 v{ACC+16*t+r}, s44, v{ACC+16*t+r}")
        for m in range(2):
            d = 32 + 8 * t + 4 * m
            for i in range(4): A(f"v_cvt_pk_bf16_f32 v{d+i}, v{ACC+16*t+8*m+2*i}, v{ACC+16*t+8*m+2*i+1}")
            A(f"buffer_store_dwordx4 {vr(d,4)}, v2, s[24:27], s46 offen")
            if not (t == 1 and m == 1): A("s_add_u32 s46, s46, 65536")
    for m in range(2):
        d = 48 + 4 * m
        for i in range(4): A(f"v_cvt_pk_bf16_f32 v{d+i}, v{ACC+32+8*m+2*i}, v{ACC+32+8*m+2*i+1}")
        A(f"buffer_store_dwordx4 {vr(d,4)}, v3, s[24:27], s48 offen offset:{512*m}")
    A("s_endpgm")
    A(f"{hl}:")
    A(f"v_lshlrev_b32 v8, 4, v1\ns_mov_b32 m0, {K1_GW}\ns_mul_i32 s41, s15, 192")
    A("buffer_load_dwordx4 v8, s[36:39], 0 offen lds")
    A("s_lshl_b32 s42, s13, 7\ns_lshl_b32 s43, s13, 6\ns_add_u32 s43, s43, 1920\ns_mov_b32 s45, 43691")
    for i in range(3):
        A(f"""v_add_u32 v8, s41, v1
        v_add_u32 v8, {64*i}, v8
        v_mul_lo_u32 v9, v8, s45
        v_lshrrev_b32 v9, 19, v9
        v_mul_u32_u24 v10, 12, v9
        v_sub_u32 v10, v8, v10
        v_mov_b32 v11, s42
        v_mov_b32 v12, s43
        v_cmp_le_u32 vcc, 8, v10
        v_mul_u32_u24 v9, 3072, v9
        v_lshl_add_u32 v9, v10, 4, v9
        v_cndmask_b32 v11, v11, v12, vcc
        v_add_u32 v{2+i}, v9, v11""")
    A("s_mul_i32 s41, s15, 3072\ns_add_u32 s41, s41, 16384")
    def wload(c):
        slot = c % K1_NS
        A(f"s_add_u32 s42, s14, {c}\ns_and_b32 s42, s42, 7\ns_mul_i32 s42, s42, {64*3072}")
        for i in range(3):
            A(f"s_add_u32 m0, s41, {slot*K1_SLOT + i*1024}\ns_nop 0")
            A(f"buffer_load_dwordx4 v{2+i}, s[20:23], s42 offen lds")
    for c in range(K1_NS): wload(c)
    A(f"v_lshlrev_b32 v8, 4, v6\nv_add_u32 v8, {K1_GW}, v8")
    for c in range(8):
        A(f"s_waitcnt vmcnt({3*waits[c]})\ns_barrier")
        if 1 <= c <= 3: wload(c + 4)
        sk = A.label("k1_nog")
        A(f"s_cmp_lg_u32 s13, 0\ns_cbranch_scc1 {sk}")
        slot = c % K1_NS; j = slot // 2; so = (slot % 2) * K1_SLOT
        A(f"s_add_u32 s42, s14, {c}\ns_and_b32 s42, s42, 7\ns_lshl_b32 s42, s42, 7\nv_add_u32 v9, s42, v8")
        for ks in range(4):
            A(f"ds_read_b128 {vr(32+8*ks,4)}, v{16+4*j+ks} offset:{so}")
            A(f"ds_read_b128 {vr(36+8*ks,4)}, v9 offset:{32*ks}")
        A("s_waitcnt lgkmcnt(0)")
        for ks in range(4):
            A(f"{MFMA} {vr(64,16)}, {vr(36+8*ks,4)}, {vr(32+8*ks,4)}, {'0' if (c==0 and ks==0) else vr(64,16)}")
        A(f"{sk}:")
    A(f"s_cmp_lg_u32 s13, 0\ns_cbranch_scc1 {ex}")
    A("s_lshl_b32 s45, s12, 2\ns_add_u32 s45, s45, s15\ns_lshl_b32 s45, s45, 7")
    A(f"s_add_u32 s45, s45, {WS_G}\nv_lshlrev_b32 v2, 2, v5\ns_nop 7")
    A(f"v_mul_f32 v64, {hex(f32(-LOG2E))}, v64\nv_exp_f32 v64, v64\ns_nop 0\nv_add_f32 v64, 1.0, v64\nv_rcp_f32 v64, v64\ns_nop 0")
    A("buffer_store_dword v64, v2, s[24:27], s45 offen")
    A(f"{ex}:\ns_endpgm")
    return 112

AT_ACC = 0
AT_LDS = 8 * 9 * 256
def gen_attn_role(A, wv="s3", standalone=True):
    K = 8; V = 40; S = [104, 120]; O = 136; Q = 152; QN = 156
    A("""s_and_b32 s30, s2, 7
    s_lshr_b32 s31, s2, 3
    s_lshl_b32 s12, s30, 2
    s_lshr_b32 s32, s31, 3
    s_add_u32 s12, s12, s32
    s_and_b32 s13, s31, 7
    v_lshlrev_b32 v2, 4, v1""")
    A(f"""s_lshl_b32 s33, s12, 16
    s_lshl_b32 s14, s13, 13
    s_add_u32 s14, s14, s33
    s_mov_b32 s15, {wv}
    s_lshl_b32 s34, s15, 10
    s_add_u32 s34, s34, s14
    s_lshl_b32 s16, {wv}, 13
    s_add_u32 s16, s16, s33
    s_add_u32 s17, s16, {WS_V}
    s_add_u32 s16, s16, {WS_K}""")
    A(f"buffer_load_dwordx4 {vr(Q,4)}, v2, s[24:27], s34 offen")
    A("""v_lshrrev_b32 v4, 5, v1
    v_and_b32 v5, 15, v1
    v_lshl_add_u32 v3, v4, 4, v5
    v_lshlrev_b32 v3, 4, v3""")
    A("s_add_u32 s18, s16, 4096\ns_add_u32 s19, s17, 4096")
    def kload(t): A(f"buffer_load_dwordx4 {vr(K+4*t,4)}, v2, s[24:27], {'s16' if t<4 else 's18'} offen offset:{(t&3)*1024}")
    def vload(t, m): A(f"buffer_load_dwordx4 {vr(V+8*t+4*m,4)}, v3, s[24:27], {'s17' if t<4 else 's19'} offen offset:{(t&3)*1024+m*512}")
    for t in range(8): kload(t)
    A("s_mov_b32 s20, 0x3f803f80")
    for r in range(64): A(f"v_mov_b32 v{V+r}, s20")
    A("s_mov_b32 exec_lo, 0xffff\ns_mov_b32 exec_hi, 0xffff")
    for t in range(8):
        vload(t, 0); vload(t, 1)
    A("s_mov_b64 exec, -1")
    def qnload():
        A("s_add_u32 s15, s15, 1\ns_and_b32 s15, s15, 7\ns_lshl_b32 s34, s15, 10\ns_add_u32 s34, s34, s14")
        A(f"buffer_load_dwordx4 {vr(QN,4)}, v2, s[24:27], s34 offen")
    qnload()
    A(f"s_mul_i32 s21, {wv}, 2304\nv_lshlrev_b32 v6, 2, v1\nv_add_u32 v7, s21, v6")
    for r in range(16): A(f"v_mov_b32 v{O+r}, 0")
    for r in range(9): A(f"ds_write_b32 v7, v{O} offset:{AT_ACC + r*256}")
    A("s_waitcnt lgkmcnt(0)\ns_barrier")
    A(f"s_mov_b32 s22, {wv}\ns_mov_b32 s23, 8")
    A("s_waitcnt vmcnt(24)")
    A(f"{MFMA} {vr(S[0],16)}, {vr(K,4)}, {vr(Q,4)}, 0")
    A("s_nop 7\ns_nop 3")
    lp = A.label("at_loop")
    A(f"{lp}:")
    for t in range(8):
        s = S[t & 1]; sn = S[(t + 1) & 1]
        if t < 7:
            if t == 0: A("s_waitcnt vmcnt(17)")
            A(f"{MFMA} {vr(sn,16)}, {vr(K+4*(t+1),4)}, {vr(Q,4)}, 0")
        else:
            A("s_waitcnt vmcnt(0)")
            A(f"{MFMA} {vr(sn,16)}, {vr(K,4)}, {vr(QN,4)}, 0")
        for r in range(8): A(f"v_exp_f32 v{s+r}, v{s+r}")
        if t == 7:
            for r in range(4): A(f"v_mov_b32 v{Q+r}, v{QN+r}")
            qnload()
        A(f"v_exp_f32 v{s+8}, v{s+8}")
        for i in range(4): A(f"v_cvt_pk_bf16_f32 v{s+i}, v{s+2*i}, v{s+2*i+1}")
        for r in range(9, 12): A(f"v_exp_f32 v{s+r}, v{s+r}")
        if t == 0:
            for r in range(9): A(f"ds_add_f32 v7, v{O+r} offset:{AT_ACC + r*256}")
            A("s_mul_i32 s21, s22, 2304\ns_add_u32 s22, s22, 1\ns_and_b32 s22, s22, 7\nv_add_u32 v7, s21, v6")
        if t < 7: A(f"s_waitcnt vmcnt({15-2*t})")
        A(f"{MFMA} {vr(O,16)}, {vr(V+8*t,4)}, {vr(s,4)}, {'0' if t==0 else vr(O,16)}")
        for r in range(12, 16): A(f"v_exp_f32 v{s+r}, v{s+r}")
        for i in range(4): A(f"v_cvt_pk_bf16_f32 v{s+8+i}, v{s+8+2*i}, v{s+8+2*i+1}")
        if t == 7: A("s_sub_u32 s23, s23, 1\ns_cmp_lg_u32 s23, 0")
        else: A("s_nop 1")
        A(f"{MFMA} {vr(O,16)}, {vr(V+8*t+4,4)}, {vr(s+8,4)}, {vr(O,16)}")
    A(f"s_cbranch_scc1 {lp}")
    A("s_nop 7\ns_nop 3")
    for r in range(9): A(f"ds_add_f32 v7, v{O+r} offset:{AT_ACC + r*256}")
    A("s_waitcnt lgkmcnt(0)\ns_barrier")
    A(f"s_mul_i32 s21, {wv}, 2304\nv_add_u32 v7, s21, v6")
    for r in range(9): A(f"ds_read_b32 v{O+r}, v7 offset:{AT_ACC + r*256}")
    A("s_waitcnt lgkmcnt(0)")
    fin = A.label("at_fin")
    A(f"v_mul_f32 v8, 0, v{O}")
    for r in range(1, 8): A(f"v_fma_f32 v8, v{O+r}, 0, v8")
    A(f"v_add_f32 v8, v8, v{O+8}")
    A(f"s_mov_b32 s20, {hex(f32(2.0**-60))}\ns_mov_b32 s21, {hex(f32(2.0**120))}")
    A("v_cmp_le_f32 vcc, s20, v8\nv_cmp_ge_f32 s[28:29], s21, v8\ns_and_b64 vcc, vcc, s[28:29]\ns_andn2_b64 s[28:29], exec, vcc")
    A(f"s_cbranch_scc0 {fin}")
    C = 8; KF = 24; VF = V
    A(f"s_lshl_b32 s34, {wv}, 10\ns_add_u32 s34, s34, s14")
    A(f"buffer_load_dwordx4 {vr(Q,4)}, v2, s[24:27], s34 offen")
    A(f"s_lshl_b32 s33, s12, 16\ns_add_u32 s16, s33, {WS_K}\ns_mov_b32 s23, 64\nv_mov_b32 v28, 0xff800000")
    l1 = A.label("at_fb1")
    A(f"{l1}:")
    A(f"buffer_load_dwordx4 {vr(KF,4)}, v2, s[24:27], s16 offen\ns_waitcnt vmcnt(0)")
    A(f"{MFMA} {vr(S[0],16)}, {vr(KF,4)}, {vr(Q,4)}, 0\ns_nop 7\ns_nop 3")
    for i in range(8): A(f"v_max3_f32 v28, v{S[0]+2*i}, v{S[0]+2*i+1}, v28")
    A(f"s_add_u32 s16, s16, 1024\ns_sub_u32 s23, s23, 1\ns_cmp_lg_u32 s23, 0\ns_cbranch_scc1 {l1}")
    A("v_mov_b32 v29, v28\ns_nop 1\nv_permlane32_swap_b32 v28, v29\ns_nop 1\nv_max_f32 v28, v28, v29")
    for r in range(16): A(f"v_sub_f32 v{C+r}, 0, v28")
    for r in range(16): A(f"v_mov_b32 v{O+r}, 0")
    A(f"s_add_u32 s16, s33, {WS_K}\ns_add_u32 s17, s33, {WS_V}\ns_mov_b32 s23, 64")
    l2 = A.label("at_fb2")
    A(f"{l2}:")
    A(f"buffer_load_dwordx4 {vr(KF,4)}, v2, s[24:27], s16 offen")
    A("s_mov_b32 exec_lo, 0xffff\ns_mov_b32 exec_hi, 0xffff")
    A(f"buffer_load_dwordx4 {vr(VF,4)}, v3, s[24:27], s17 offen")
    A(f"buffer_load_dwordx4 {vr(VF+4,4)}, v3, s[24:27], s17 offen offset:512")
    A("s_mov_b64 exec, -1\ns_waitcnt vmcnt(0)")
    s = S[0]
    A(f"{MFMA} {vr(s,16)}, {vr(KF,4)}, {vr(Q,4)}, {vr(C,16)}\ns_nop 7\ns_nop 3")
    for r in range(16): A(f"v_exp_f32 v{s+r}, v{s+r}")
    A("s_nop 0")
    for i in range(4): A(f"v_cvt_pk_bf16_f32 v{s+i}, v{s+2*i}, v{s+2*i+1}")
    for i in range(4): A(f"v_cvt_pk_bf16_f32 v{s+8+i}, v{s+8+2*i}, v{s+8+2*i+1}")
    A("s_nop 1")
    A(f"{MFMA} {vr(O,16)}, {vr(VF,4)}, {vr(s,4)}, {vr(O,16)}")
    A(f"{MFMA} {vr(O,16)}, {vr(VF+4,4)}, {vr(s+8,4)}, {vr(O,16)}")
    A("s_nop 7\ns_nop 7")
    A(f"s_add_u32 s16, s16, 1024\ns_add_u32 s17, s17, 1024\ns_sub_u32 s23, s23, 1\ns_cmp_lg_u32 s23, 0\ns_cbranch_scc1 {l2}")
    A(f"{fin}:")
    A(f"v_rcp_f32 v8, v{O+8}")
    A(f"s_lshl_b32 s34, s13, 3\ns_add_u32 s34, s34, {wv}\ns_lshl_b32 s34, s34, 5\ns_add_u32 s34, s34, s12\ns_lshl_b32 s34, s34, 10\ns_add_u32 s34, s34, {WS_O}")
    for r in range(8): A(f"v_mul_f32 v{O+r}, v{O+r}, v8")
    for i in range(4): A(f"v_cvt_pk_bf16_f32 v{12+i}, v{O+2*i}, v{O+2*i+1}")
    A(f"buffer_store_dwordx4 v[12:15], v2, s[24:27], s34 offen")
    A("s_endpgm")

def gen_attn(A, name):
    khead(A, name)
    ex = A.label("at_exit")
    A(f"s_cmp_ge_u32 s2, 256\ns_cbranch_scc1 {ex}")
    A("s_load_dwordx2 s[10:11], s[0:1], 80\nv_readfirstlane_b32 s3, v0\nv_and_b32 v1, 63, v0\ns_lshr_b32 s3, s3, 6\ns_waitcnt lgkmcnt(0)")
    srd(A, 24, 10, WS_SIZE)
    gen_attn_role(A)
    A(f"{ex}:\ns_endpgm")
    return 160

FA_X = 0; FA_W = 65536; FA_SLOT = 6400; FA_UP = 3072 + 128; FA_NS = 3; FA_WAVE = FA_SLOT * FA_NS
FA_LDS = FA_W + 4 * FA_WAVE
def wgmap_ffn(A):
    A("""s_and_b32 s30, s2, 7
    s_lshr_b32 s31, s2, 3
    s_lshl_b32 s12, s30, 2
    s_and_b32 s32, s31, 3
    s_add_u32 s12, s12, s32
    s_lshr_b32 s13, s31, 2""")

def gen_ffa_role(A, wv, done, base=0):
    ACC = 64; XF = 16; WF = 32
    A(f"s_lshl_b32 s40, s12, 16\ns_lshl_b32 s41, {wv}, 14\ns_add_u32 s40, s40, s41\ns_add_u32 s41, s41, {base+FA_X}")
    A("v_lshlrev_b32 v2, 4, v1")
    for i in range(16):
        A(f"v_xor_b32 v{16+i}, {16*i}, v2")
    for i in range(16):
        A(f"s_add_u32 m0, s41, {i*1024}\ns_add_u32 s42, s40, {i*1024}")
        A(f"buffer_load_dwordx4 v{16+i}, s[16:19], s42 offen lds")
    A(f"s_lshl_b32 s14, s13, 2\ns_add_u32 s14, s14, {wv}\ns_mul_i32 s15, s14, 96")
    A("s_mov_b32 s45, 43691")
    for j in range(3):
        A(f"""v_add_u32 v8, {64*j}, v1
        v_mul_lo_u32 v9, v8, s45
        v_lshrrev_b32 v9, 18, v9
        v_mul_u32_u24 v10, 6, v9
        v_sub_u32 v10, v8, v10
        v_mul_u32_u24 v9, 2752, v9
        v_lshl_add_u32 v{3+j}, v10, 4, v9""")
    A(f"s_mul_i32 s43, {wv}, {FA_WAVE}\ns_add_u32 s43, s43, {base+FA_W}")
    def wload():
        for j in range(3):
            A(f"s_add_u32 m0, s46, {j*1024}\ns_nop 0\nbuffer_load_dwordx4 v{3+j}, s[20:23], s44 offen lds")
        for j in range(3):
            A(f"s_add_u32 m0, s46, {FA_UP+j*1024}\ns_nop 0\nbuffer_load_dwordx4 v{3+j}, s[36:39], s44 offen lds")
        A(f"s_add_u32 s44, s44, {32*2752}\ns_add_u32 s46, s46, {FA_SLOT}\ns_cmp_eq_u32 s46, s47\ns_cselect_b32 s46, s43, s46")
    A(f"s_mov_b32 s44, s15\ns_mov_b32 s46, s43\ns_add_u32 s47, s43, {FA_WAVE}")
    for c in range(FA_NS): wload()
    A(f"""v_lshrrev_b32 v8, 5, v1
    v_and_b32 v9, 15, v1
    v_lshrrev_b32 v10, 2, v9
    v_lshl_add_u32 v10, v8, 3, v10
    v_mul_u32_u24 v10, 96, v10
    v_and_b32 v11, 3, v1
    v_lshl_add_u32 v10, v11, 3, v10
    v_bfe_u32 v11, v1, 4, 1
    v_mul_u32_u24 v11, {FA_UP}, v11
    v_add_u32 v6, v10, v11
    v_xor_b32 v9, v9, v8
    v_lshlrev_b32 v9, 4, v9
    v_and_b32 v10, 31, v1
    v_lshl_add_u32 v7, v10, 10, v9""")
    if base + FA_X: A(f"v_add_u32 v7, {base+FA_X}, v7")
    for r in range(96): A(f"v_mov_b32 v{ACC+r}, 0")
    A(f"s_waitcnt vmcnt({6*FA_NS})\ns_barrier")
    A(f"s_cmp_ge_u32 s14, 29\ns_cbranch_scc1 {done}")
    A("s_mov_b32 s48, s43\ns_mov_b32 s49, 0")
    lp = A.label("fa_loop")
    A(f"{lp}:")
    A("v_add_u32 v8, s48, v6\nv_xor_b32 v9, s49, v7\nv_xor_b32 v10, 32, v9")
    A(f"s_waitcnt vmcnt({6*(FA_NS-1)})")
    for ks in range(2):
        for tt in range(2):
            A(f"ds_read_b128 {vr(XF+8*ks+4*tt,4)}, v{9+ks} offset:{32768*tt}")
        for t in range(3):
            for p in range(2):
                A(f"ds_read_b64_tr_b16 {vr(WF+12*ks+4*t+2*p,2)}, v8 offset:{(16*ks+4*p)*96+32*t}")
        if ks == 0: A("s_waitcnt lgkmcnt(7)")
    A(f"s_add_u32 s48, s48, {FA_SLOT}\ns_cmp_eq_u32 s48, s47\ns_cselect_b32 s48, s43, s48\ns_add_u32 s49, s49, 64")
    A("s_waitcnt lgkmcnt(8)")
    for t in range(3):
        for tt in range(2):
            a = vr(ACC + 48*tt + 16*t, 16)
            A(f"{MFMA} {a}, {vr(WF+4*t,4)}, {vr(XF+4*tt,4)}, {a}")
    A("s_waitcnt lgkmcnt(0)")
    wload()
    for t in range(3):
        for tt in range(2):
            a = vr(ACC + 48*tt + 16*t, 16)
            A(f"{MFMA} {a}, {vr(WF+12+4*t,4)}, {vr(XF+8+4*tt,4)}, {a}")
    A(f"s_cmp_lt_u32 s49, 1024\ns_cbranch_scc1 {lp}")
    c0 = 2 * 0.7978845608028654 * LOG2E
    A(f"s_mov_b32 s50, {hex(f32(-c0))}\ns_mov_b32 s51, {hex(f32(-c0*0.044715))}")
    A(f"s_lshl_b32 s40, s12, 1\ns_mul_i32 s40, s40, 86\ns_mul_i32 s41, s14, 3\ns_add_u32 s40, s40, s41\ns_lshl_b32 s40, s40, 10\ns_add_u32 s40, s40, {WS_H}")
    A("v_mov_b32 v15, s50\ns_nop 4")
    for t in range(3):
        if t == 2: A(f"s_cmp_eq_u32 s14, 28\ns_cbranch_scc1 {done}")
        for tt in range(2):
            a = ACC + 48*tt + 16*t; T = 16
            for r in range(8): A(f"v_mul_f32 v{T+r}, v{a+r}, v{a+r}")
            for r in range(8): A(f"v_fma_f32 v{T+r}, v{T+r}, s51, v15")
            for r in range(8): A(f"v_mul_f32 v{T+r}, v{T+r}, v{a+r}")
            for r in range(8): A(f"v_exp_f32 v{T+r}, v{T+r}")
            for r in range(8): A(f"v_mul_f32 v{a+r}, v{a+r}, v{a+8+r}")
            for r in range(8): A(f"v_add_f32 v{T+r}, 1.0, v{T+r}")
            for r in range(8): A(f"v_rcp_f32 v{T+r}, v{T+r}")
            A("s_nop 0")
            for r in range(8): A(f"v_mul_f32 v{a+r}, v{a+r}, v{T+r}")
            for i in range(4): A(f"v_cvt_pk_bf16_f32 v{a+8+i}, v{a+2*i}, v{a+2*i+1}")
            A(f"s_add_u32 s41, s40, {(tt*86+t)*1024}")
            A(f"buffer_store_dwordx4 {vr(a+8,4)}, v2, s[24:27], s41 offen")

def gen_ffa(A, name):
    khead(A, name)
    ex = A.label("fa_exit")
    A(f"s_cmp_ge_u32 s2, 256\ns_cbranch_scc1 {ex}")
    A("s_load_dwordx2 s[4:5], s[0:1], 0\ns_load_dwordx4 s[8:11], s[0:1], 32\ns_load_dwordx2 s[6:7], s[0:1], 80")
    A("v_readfirstlane_b32 s3, v0\nv_and_b32 v1, 63, v0\ns_lshr_b32 s3, s3, 6")
    wgmap_ffn(A)
    A("s_waitcnt lgkmcnt(0)")
    srd(A, 16, 4, 2048*1024); srd(A, 20, 8, 512*2752); srd(A, 36, 10, 512*2752); srd(A, 24, 6, WS_SIZE)
    gen_ffa_role(A, "s3", ex)
    A(f"{ex}:\ns_waitcnt vmcnt(0)\ns_endpgm")
    return 160

FB_NS = 4; FB_WAVE = 4096 * FB_NS; FB_LDS = 4 * FB_WAVE
def gen_down_role(A, wv, kind, base=0):
    nks = 86 if kind == "B" else 32
    nch = nks // 2; act = WS_H if kind == "B" else WS_O
    per = (nch + 3) // 4
    ACC = 96; HF = 32; WF = 16
    A("v_lshlrev_b32 v2, 4, v1")
    A("""v_lshrrev_b32 v8, 3, v1
    v_bfe_u32 v9, v1, 4, 1
    v_lshlrev_b32 v9, 1, v9
    v_and_b32 v10, 7, v1
    v_xor_b32 v9, v9, v10
    v_lshlrev_b32 v9, 4, v9
    v_lshl_add_u32 v3, v8, 10, v9""")
    A(f"""s_lshr_b32 s44, {wv}, 1
    s_lshl_b32 s45, s12, 1
    s_add_u32 s40, s45, s44
    s_xor_b32 s41, s40, 1
    s_mul_i32 s40, s40, {nks*1024}
    s_mul_i32 s41, s41, {nks*1024}
    s_lshl_b32 s45, {wv}, 11
    s_add_u32 s45, s45, {act}
    s_add_u32 s40, s40, s45
    s_add_u32 s41, s41, s45
    s_lshl_b32 s42, {wv}, 15
    s_lshl_b32 s45, s13, 7
    s_add_u32 s42, s42, s45
    s_mul_i32 s43, {wv}, {FB_WAVE}""")
    if base: A(f"s_add_u32 s43, s43, {base}")
    def load(i):
        sl = i % FB_NS
        for j in range(4):
            A(f"s_add_u32 m0, s43, {sl*4096 + j*1024}\ns_add_u32 s45, s42, {i*131072 + j*8192}")
            A("buffer_load_dwordx4 v3, s[20:23], s45 offen lds")
        for tt in range(2):
            A(f"s_add_u32 s45, s{40+tt}, {i*8192}")
            for ks in range(2):
                A(f"buffer_load_dwordx4 {vr(HF+16*sl+8*ks+4*tt,4)}, v2, s[24:27], s45 offen offset:{ks*1024}")
    short = (nch % 4 != 0)
    lastlab = A.label("dn_red")
    npre = min(FB_NS, per)
    for i in range(npre): load(i)
    A(f"""v_lshrrev_b32 v8, 5, v1
    v_bfe_u32 v9, v1, 2, 2
    v_lshl_add_u32 v8, v8, 2, v9
    v_lshlrev_b32 v8, 7, v8
    v_and_b32 v10, 1, v1
    v_lshl_add_u32 v8, v10, 6, v8
    v_bfe_u32 v10, v1, 4, 1
    v_lshl_add_u32 v8, v10, 4, v8
    v_bfe_u32 v10, v1, 1, 1
    v_lshl_add_u32 v8, v10, 3, v8
    v_bfe_u32 v10, v1, 3, 1
    s_and_b32 s45, {wv}, 1
    v_xor_b32 v10, s45, v10
    v_lshl_add_u32 v8, v10, 5, v8
    v_add_u32 v4, s43, v8
    v_xor_b32 v5, 32, v4""")
    for i in range(per):
        sl = i % FB_NS
        issued = min(per, i + FB_NS) if i else npre
        issued = min(per, npre + max(0, i - 0)) if False else issued
        if i == per - 1 and short:
            A(f"s_cmp_ge_u32 {wv}, {nch % 4}\ns_cbranch_scc1 {lastlab}")
        A(f"s_waitcnt vmcnt({8*(ISS(i,per,npre,short) )})")
        for ks in range(2):
            for j in range(2):
                for p in range(2):
                    A(f"ds_read_b64_tr_b16 {vr(WF+8*ks+4*j+2*p,2)}, v{4+j} offset:{sl*4096 + (16*ks+8*p)*128}")
        A("s_waitcnt lgkmcnt(4)")
        for ks in range(2):
            if ks == 1: A("s_waitcnt lgkmcnt(0)")
            for tt in range(2):
                for j in range(2):
                    a = vr(ACC + 32*tt + 16*j, 16)
                    A(f"{MFMA} {a}, {vr(WF+8*ks+4*j,4)}, {vr(HF+16*sl+8*ks+4*tt,4)}, {'0' if (i==0 and ks==0) else a}")
        if i + FB_NS < per: load(i + FB_NS)
    A(f"{lastlab}:")
    A("s_waitcnt vmcnt(0)")
    A(f"s_lshl_b32 s45, s12, 1\ns_add_u32 s45, s45, s44\ns_lshl_b32 s46, s45, 7\ns_add_u32 s46, s46, {WS_G}")
    A("v_and_b32 v8, 31, v1\nv_lshlrev_b32 v9, 2, v8\nbuffer_load_dword v6, v9, s[24:27], s46 offen")
    A(f"s_lshl_b32 s47, s12, 3\ns_add_u32 s47, s47, s13\ns_lshl_b32 s47, s47, 2\ns_add_u32 s47, s47, {wv}\ns_lshl_b32 s47, s47, 11\ns_add_u32 s47, s47, {WS_P}")
    if kind == "O":
        A("buffer_load_dwordx4 v[16:19], v2, s[24:27], s47 offen\nbuffer_load_dwordx4 v[20:23], v2, s[24:27], s47 offen offset:1024")
    A("s_barrier")
    for q in range(1, 4):
        A(f"s_xor_b32 s46, {wv}, {q}\ns_mul_i32 s46, s46, {FB_WAVE}\nv_add_u32 v10, s46, v2")
        for k in range(4):
            A(f"ds_write_b128 v10, {vr(ACC+16*q+4*k,4)} offset:{base + (q-1)*4096 + k*1024}")
    A("v_add_u32 v10, s43, v2\ns_waitcnt lgkmcnt(0)\ns_barrier")
    for q in range(1, 4):
        for k in range(4):
            A(f"ds_read_b128 {vr(ACC+16*q+4*k,4)}, v10 offset:{(q-1)*4096 + k*1024}")
    for q in range(1, 4):
        A(f"s_waitcnt lgkmcnt({12-4*q})")
        for r in range(16): A(f"v_add_f32 v{ACC+r}, v{ACC+r}, v{ACC+16*q+r}")
    A("s_waitcnt vmcnt(0)")
    if kind == "B":
        A("v_sub_f32 v6, 1.0, v6")
        for r in range(16): A(f"v_mul_f32 v{ACC+r}, v{ACC+r}, v6")
        for i in range(8): A(f"v_cvt_pk_bf16_f32 v{16+i}, v{ACC+2*i}, v{ACC+2*i+1}")
        A("buffer_store_dwordx4 v[16:19], v2, s[24:27], s47 offen\nbuffer_store_dwordx4 v[20:23], v2, s[24:27], s47 offen offset:1024")
    else:
        for i in range(8):
            A(f"v_lshlrev_b32 v24, 16, v{16+i}\nv_and_b32 v25, 0xffff0000, v{16+i}")
            A(f"v_fma_f32 v{ACC+2*i}, v{ACC+2*i}, v6, v24\nv_fma_f32 v{ACC+2*i+1}, v{ACC+2*i+1}, v6, v25")
        for i in range(8): A(f"v_cvt_pk_bf16_f32 v{16+i}, v{ACC+2*i}, v{ACC+2*i+1}")
        A(f"""v_lshrrev_b32 v9, 5, v1
        v_lshlrev_b32 v9, 6, v9
        v_lshl_add_u32 v9, v8, 10, v9
        s_lshl_b32 s45, s45, 15
        s_lshl_b32 s46, s13, 7
        s_add_u32 s45, s45, s46
        s_and_b32 s46, {wv}, 1
        s_lshl_b32 s46, s46, 5
        s_add_u32 s45, s45, s46""")
        A("buffer_store_dwordx4 v[16:19], v9, s[16:19], s45 offen\nbuffer_store_dwordx4 v[20:23], v9, s[16:19], s45 offen offset:16")

def ISS(i, per, npre, short):
    issued = min(per, npre + i)
    return issued - (i + 1)

def gen_down(A, name, kind):
    khead(A, name)
    ex = A.label("dn_exit")
    A(f"s_cmp_ge_u32 s2, 256\ns_cbranch_scc1 {ex}")
    A(f"s_load_dwordx2 s[4:5], s[0:1], {48 if kind=='B' else 16}\ns_load_dwordx2 s[6:7], s[0:1], 80\ns_load_dwordx2 s[8:9], s[0:1], 64")
    A("v_readfirstlane_b32 s3, v0\nv_and_b32 v1, 63, v0\ns_lshr_b32 s3, s3, 6")
    wgmap_ffn(A)
    A("s_waitcnt lgkmcnt(0)")
    srd(A, 20, 4, (1376 if kind == "B" else 512) * 1024); srd(A, 24, 6, WS_SIZE); srd(A, 16, 8, 2048*1024)
    gen_down_role(A, "s3", kind)
    A(f"{ex}:\ns_endpgm")
    return 160

def header():
    ref = open("cdna_kernels/" + NAME + ".s.ref").read().split("\n")
    return [l for l in ref if l.startswith(";") and "@launch" not in l and "Override" not in l and "grid=ceil" not in l]

def build(launches):
    A = Asm()
    for l in header(): A(l)
    for (n, g, blk, lds, fn) in launches:
        A(f"; @launch kernel={n} grid=({g},1,1) block=({blk},1,1) lds={lds}")
    A('.amdgcn_target "amdgcn-amd-amdhsa--gfx950"\n.text')
    descs = []
    for (n, g, blk, lds, fn) in launches:
        st = len(A.L)
        v = fn(A, n)
        errs = check_hazards(A.L[st:])
        for e in errs: print("HAZARD", n, e, file=sys.stderr)
        descs.append((n, v))
    A('.section .rodata,"a"')
    for n, v in descs: kdesc(A, n, v)
    return A.text()

if __name__ == "__main__":
    L = [("k1_kernel", 256, 512, K1_LDS, gen_k1),
         ("ffa_kernel", 256, 256, FA_LDS, gen_ffa),
         ("attn_kernel", 256, 512, AT_LDS, gen_attn),
         ("ffb_kernel", 256, 256, FB_LDS, lambda A, n: gen_down(A, n, "B")),
         ("out_kernel", 256, 256, FB_LDS, lambda A, n: gen_down(A, n, "O"))]
    out = sys.argv[1] if len(sys.argv) > 1 else "cdna_kernels/" + NAME + ".s"
    open(out, "w").write(build(L))
```

```python
import sys, math, struct, os
from asmlib import *

NAME = "gated_mix__mha_block__geglu_ffn__prompt"
WS_Q = 0; WS_K = 2 << 20; WS_V = 4 << 20; WS_O = 6 << 20; WS_H = 8 << 20; WS_P = 14 << 20; WS_G = 16 << 20
WS_SIZE = (16 << 20) + 8192
def f32(x): return struct.unpack("<I", struct.pack("<f", x))[0]
LOG2E = 1.4426950408889634
MFMA = "v_mfma_f32_32x32x16_bf16"

def srd(A, d, b, size):
    A(f"s_mov_b32 s{d}, s{b}\ns_mov_b32 s{d+1}, s{b+1}\ns_mov_b32 s{d+2}, {size}\ns_mov_b32 s{d+3}, 0x20000")

def khead(A, name):
    A(f".globl {name}\n.p2align 8\n.type {name},@function\n{name}:")

def kdesc(A, name, vgpr, sgpr=96):
    acc = (vgpr + 3) // 4 * 4
    A(".p2align 6")
    A(f".amdhsa_kernel {name}")
    for l in (f".amdhsa_next_free_vgpr {vgpr}", f".amdhsa_next_free_sgpr {sgpr}", f".amdhsa_accum_offset {acc}",
              ".amdhsa_group_segment_fixed_size 0", ".amdhsa_kernarg_size 88", ".amdhsa_user_sgpr_count 2",
              ".amdhsa_user_sgpr_kernarg_segment_ptr 1", ".amdhsa_system_sgpr_workgroup_id_x 1"):
        A(l)
    A(".end_amdhsa_kernel")

K1_SLOT = 28672; K1_NS = 5; K1_GW = K1_SLOT * K1_NS; K1_LDS = K1_GW + 1024
def gen_k1(A, name):
    khead(A, name)
    ex = A.label("k1_exit"); hl = A.label("k1_helper")
    A(f"s_cmp_ge_u32 s2, 256\ns_cbranch_scc1 {ex}")
    A("s_load_dwordx4 s[4:7], s[0:1], 0\ns_load_dwordx2 s[8:9], s[0:1], 56\ns_load_dwordx2 s[10:11], s[0:1], 80")
    A("v_readfirstlane_b32 s3, v0\nv_and_b32 v1, 63, v0\ns_lshr_b32 s3, s3, 6")
    A("""s_and_b32 s30, s2, 7
    s_lshr_b32 s31, s2, 3
    s_and_b32 s12, s30, 1
    s_lshl_b32 s12, s12, 3
    s_and_b32 s33, s31, 7
    s_add_u32 s12, s12, s33
    s_lshr_b32 s13, s30, 1
    s_lshl_b32 s13, s13, 2
    s_lshr_b32 s34, s31, 3
    s_add_u32 s13, s13, s34
    s_lshl_b32 s34, s34, 1
    s_add_u32 s14, s33, s34
    s_and_b32 s15, s3, 3""")
    A("v_and_b32 v5, 31, v1\nv_lshrrev_b32 v6, 5, v1")
    A("""v_lshrrev_b32 v7, 1, v5
    v_and_b32 v7, 7, v7
    v_xor_b32 v7, v7, v6
    v_lshlrev_b32 v7, 4, v7
    v_lshlrev_b32 v8, 7, v5
    v_add_u32 v7, v7, v8
    s_lshl_b32 s32, s15, 12
    v_add_u32 v16, s32, v7""")
    for ks in range(1, 4): A(f"v_xor_b32 v{16+ks}, {32*ks}, v16")
    for j in (1, 2):
        for ks in range(4): A(f"v_add_u32 v{16+4*j+ks}, {j*2*K1_SLOT}, v{16+ks}")
    A("s_waitcnt lgkmcnt(0)")
    srd(A, 16, 4, 2048 * 1024); srd(A, 20, 6, 512 * 3072); srd(A, 24, 10, WS_SIZE); srd(A, 36, 8, 1024)
    A(f"s_cmp_ge_u32 s3, 4\ns_cbranch_scc1 {hl}")
    waits = [4, 3, 3, 3, 3, 2, 1, 0]
    A("""v_lshrrev_b32 v8, 3, v1
    v_lshlrev_b32 v8, 10, v8
    v_lshrrev_b32 v9, 4, v1
    v_and_b32 v10, 7, v1
    v_xor_b32 v9, v9, v10
    v_lshlrev_b32 v9, 4, v9
    v_add_u32 v2, v8, v9
    v_xor_b32 v3, 64, v2
    s_lshl_b32 s40, s12, 17
    s_lshl_b32 s41, s15, 15
    s_add_u32 s40, s40, s41""")
    def xload(c):
        slot = c % K1_NS
        A(f"s_add_u32 s42, s14, {c}\ns_and_b32 s42, s42, 7\ns_lshl_b32 s42, s42, 7\ns_add_u32 s42, s42, s40")
        for i in range(4):
            A(f"s_add_u32 m0, s32, {slot*K1_SLOT + i*1024}")
            if i: A("s_add_u32 s42, s42, 8192")
            else: A("s_nop 0")
            A(f"buffer_load_dwordx4 v{2 + (i&1)}, s[16:19], s42 offen lds")
    for c in range(K1_NS): xload(c)
    A("""v_and_b32 v8, 15, v1
    v_lshrrev_b32 v9, 2, v8
    v_lshl_add_u32 v9, v6, 3, v9
    v_mul_u32_u24 v9, 192, v9
    v_and_b32 v10, 3, v1
    v_lshl_add_u32 v9, v10, 3, v9
    v_bfe_u32 v10, v1, 4, 1
    v_lshl_add_u32 v9, v10, 5, v9
    v_add_u32 v28, 16384, v9""")
    A(f"v_add_u32 v29, {2*K1_SLOT}, v28\nv_add_u32 v30, {4*K1_SLOT}, v28")
    ACC = 64; FR = 32
    def reads(c, ks, b):
        slot = c % K1_NS; j = slot // 2; so = (slot % 2) * K1_SLOT
        f = FR + 16 * b
        A(f"ds_read_b128 {vr(f,4)}, v{16+4*j+ks} offset:{so}")
        for t in range(3):
            for p in range(2):
                A(f"ds_read_b64_tr_b16 {vr(f+4+4*t+2*p,2)}, v{28+j} offset:{so + (16*ks+4*p)*192 + 64*t}")
    def mf(b, first):
        f = FR + 16 * b
        for t in range(3):
            acc = vr(ACC + 16 * t, 16); c = "0" if first else acc
            if t < 2: A(f"{MFMA} {acc}, {vr(f+4+4*t,4)}, {vr(f,4)}, {c}")
            else:     A(f"{MFMA} {acc}, {vr(f,4)}, {vr(f+4+4*t,4)}, {c}")
    for c in range(8):
        A(f"s_waitcnt vmcnt({4*waits[c]})\ns_barrier")
        reads(c, 0, 0)
        if 1 <= c <= 3: xload(c + 4)
        for ks in range(4):
            if ks < 3:
                reads(c, ks + 1, (ks + 1) & 1); A("s_waitcnt lgkmcnt(7)")
            else:
                A("s_waitcnt lgkmcnt(0)")
            mf(ks & 1, c == 0 and ks == 0)
    A(f"s_mov_b32 s44, {hex(f32(0.25*LOG2E))}\ns_cmp_lt_u32 s13, 8\ns_cselect_b32 s44, s44, 1.0")
    A("s_lshl_b32 s45, s12, 2\ns_add_u32 s45, s45, s15")
    A("s_lshl_b32 s46, s13, 18\ns_lshl_b32 s47, s45, 10\ns_add_u32 s46, s46, s47")
    A("s_lshl_b32 s48, s13, 17\ns_add_u32 s48, s48, s47")
    A(f"s_add_u32 s48, s48, {WS_V}")
    A("v_lshlrev_b32 v2, 4, v1")
    A("""v_and_b32 v8, 15, v1
    v_lshl_add_u32 v8, v6, 4, v8
    v_lshlrev_b32 v3, 4, v8
    v_bfe_u32 v10, v1, 4, 1
    v_lshl_add_u32 v3, v10, 16, v3""")
    A("s_nop 4")
    for t in range(2):
        for r in range(16): A(f"v_mul_f32 v{ACC+16*t+r}, s44, v{ACC+16*t+r}")
        for m in range(2):
            d = 32 + 8 * t + 4 * m
            for i in range(4): A(f"v_cvt_pk_bf16_f32 v{d+i}, v{ACC+16*t+8*m+2*i}, v{ACC+16*t+8*m+2*i+1}")
            A(f"buffer_store_dwordx4 {vr(d,4)}, v2, s[24:27], s46 offen")
            if not (t == 1 and m == 1): A("s_add_u32 s46, s46, 65536")
    for m in range(2):
        d = 48 + 4 * m
        for i in range(4): A(f"v_cvt_pk_bf16_f32 v{d+i}, v{ACC+32+8*m+2*i}, v{ACC+32+8*m+2*i+1}")
        A(f"buffer_store_dwordx4 {vr(d,4)}, v3, s[24:27], s48 offen offset:{512*m}")
    A("s_endpgm")
    A(f"{hl}:")
    A(f"v_lshlrev_b32 v8, 4, v1\ns_mov_b32 m0, {K1_GW}\ns_mul_i32 s41, s15, 192")
    A("buffer_load_dwordx4 v8, s[36:39], 0 offen lds")
    A("s_lshl_b32 s42, s13, 7\ns_lshl_b32 s43, s13, 6\ns_add_u32 s43, s43, 1920\ns_mov_b32 s45, 43691")
    for i in range(3):
        A(f"""v_add_u32 v8, s41, v1
        v_add_u32 v8, {64*i}, v8
        v_mul_lo_u32 v9, v8, s45
        v_lshrrev_b32 v9, 19, v9
        v_mul_u32_u24 v10, 12, v9
        v_sub_u32 v10, v8, v10
        v_mov_b32 v11, s42
        v_mov_b32 v12, s43
        v_cmp_le_u32 vcc, 8, v10
        v_mul_u32_u24 v9, 3072, v9
        v_lshl_add_u32 v9, v10, 4, v9
        v_cndmask_b32 v11, v11, v12, vcc
        v_add_u32 v{2+i}, v9, v11""")
    A("s_mul_i32 s41, s15, 3072\ns_add_u32 s41, s41, 16384")
    def wload(c):
        slot = c % K1_NS
        A(f"s_add_u32 s42, s14, {c}\ns_and_b32 s42, s42, 7\ns_mul_i32 s42, s42, {64*3072}")
        for i in range(3):
            A(f"s_add_u32 m0, s41, {slot*K1_SLOT + i*1024}\ns_nop 0")
            A(f"buffer_load_dwordx4 v{2+i}, s[20:23], s42 offen lds")
    for c in range(K1_NS): wload(c)
    A(f"v_lshlrev_b32 v8, 4, v6\nv_add_u32 v8, {K1_GW}, v8")
    for c in range(8):
        A(f"s_waitcnt vmcnt({3*waits[c]})\ns_barrier")
        if 1 <= c <= 3: wload(c + 4)
        sk = A.label("k1_nog")
        A(f"s_cmp_lg_u32 s13, 0\ns_cbranch_scc1 {sk}")
        slot = c % K1_NS; j = slot // 2; so = (slot % 2) * K1_SLOT
        A(f"s_add_u32 s42, s14, {c}\ns_and_b32 s42, s42, 7\ns_lshl_b32 s42, s42, 7\nv_add_u32 v9, s42, v8")
        for ks in range(4):
            A(f"ds_read_b128 {vr(32+8*ks,4)}, v{16+4*j+ks} offset:{so}")
            A(f"ds_read_b128 {vr(36+8*ks,4)}, v9 offset:{32*ks}")
        A("s_waitcnt lgkmcnt(0)")
        for ks in range(4):
            A(f"{MFMA} {vr(64,16)}, {vr(36+8*ks,4)}, {vr(32+8*ks,4)}, {'0' if (c==0 and ks==0) else vr(64,16)}")
        A(f"{sk}:")
    A(f"s_cmp_lg_u32 s13, 0\ns_cbranch_scc1 {ex}")
    A("s_lshl_b32 s45, s12, 2\ns_add_u32 s45, s45, s15\ns_lshl_b32 s45, s45, 7")
    A(f"s_add_u32 s45, s45, {WS_G}\nv_lshlrev_b32 v2, 2, v5\ns_nop 7")
    A(f"v_mul_f32 v64, {hex(f32(-LOG2E))}, v64\nv_exp_f32 v64, v64\ns_nop 0\nv_add_f32 v64, 1.0, v64\nv_rcp_f32 v64, v64\ns_nop 0")
    A("buffer_store_dword v64, v2, s[24:27], s45 offen")
    A(f"{ex}:\ns_endpgm")
    return 112

AT_ACC = 0
AT_LDS = 8 * 9 * 256
def gen_attn_role(A, wv="s3", standalone=True):
    K = 8; V = 40; S = [104, 120]; O = 136; Q = 152; QN = 156
    A("""s_and_b32 s30, s2, 7
    s_lshr_b32 s31, s2, 3
    s_lshl_b32 s12, s30, 2
    s_lshr_b32 s32, s31, 3
    s_add_u32 s12, s12, s32
    s_and_b32 s13, s31, 7
    v_lshlrev_b32 v2, 4, v1""")
    A(f"""s_lshl_b32 s33, s12, 16
    s_lshl_b32 s14, s13, 13
    s_add_u32 s14, s14, s33
    s_mov_b32 s15, {wv}
    s_lshl_b32 s34, s15, 10
    s_add_u32 s34, s34, s14
    s_lshl_b32 s16, {wv}, 13
    s_add_u32 s16, s16, s33
    s_add_u32 s17, s16, {WS_V}
    s_add_u32 s16, s16, {WS_K}""")
    A(f"buffer_load_dwordx4 {vr(Q,4)}, v2, s[24:27], s34 offen")
    A("""v_lshrrev_b32 v4, 5, v1
    v_and_b32 v5, 15, v1
    v_lshl_add_u32 v3, v4, 4, v5
    v_lshlrev_b32 v3, 4, v3""")
    A("s_add_u32 s18, s16, 4096\ns_add_u32 s19, s17, 4096")
    def kload(t): A(f"buffer_load_dwordx4 {vr(K+4*t,4)}, v2, s[24:27], {'s16' if t<4 else 's18'} offen offset:{(t&3)*1024}")
    def vload(t, m): A(f"buffer_load_dwordx4 {vr(V+8*t+4*m,4)}, v3, s[24:27], {'s17' if t<4 else 's19'} offen offset:{(t&3)*1024+m*512}")
    for t in range(8): kload(t)
    A("s_mov_b32 s20, 0x3f803f80")
    for r in range(64): A(f"v_mov_b32 v{V+r}, s20")
    A("s_mov_b32 exec_lo, 0xffff\ns_mov_b32 exec_hi, 0xffff")
    for t in range(8):
        vload(t, 0); vload(t, 1)
    A("s_mov_b64 exec, -1")
    def qnload():
        A("s_add_u32 s15, s15, 1\ns_and_b32 s15, s15, 7\ns_lshl_b32 s34, s15, 10\ns_add_u32 s34, s34, s14")
        A(f"buffer_load_dwordx4 {vr(QN,4)}, v2, s[24:27], s34 offen")
    qnload()
    A(f"s_mul_i32 s21, {wv}, 2304\nv_lshlrev_b32 v6, 2, v1\nv_add_u32 v7, s21, v6")
    for r in range(16): A(f"v_mov_b32 v{O+r}, 0")
    for r in range(9): A(f"ds_write_b32 v7, v{O} offset:{AT_ACC + r*256}")
    A("s_waitcnt lgkmcnt(0)\ns_barrier")
    A(f"s_mov_b32 s22, {wv}\ns_mov_b32 s23, 8")
    A("s_waitcnt vmcnt(24)")
    A(f"{MFMA} {vr(S[0],16)}, {vr(K,4)}, {vr(Q,4)}, 0")
    A("s_nop 7\ns_nop 3")
    lp = A.label("at_loop")
    A(f"{lp}:")
    for t in range(8):
        s = S[t & 1]; sn = S[(t + 1) & 1]
        if t < 7:
            if t == 0: A("s_waitcnt vmcnt(17)")
            A(f"{MFMA} {vr(sn,16)}, {vr(K+4*(t+1),4)}, {vr(Q,4)}, 0")
        else:
            A("s_waitcnt vmcnt(0)")
            A(f"{MFMA} {vr(sn,16)}, {vr(K,4)}, {vr(QN,4)}, 0")
        for r in range(8): A(f"v_exp_f32 v{s+r}, v{s+r}")
        if t == 7:
            for r in range(4): A(f"v_mov_b32 v{Q+r}, v{QN+r}")
            qnload()
        A(f"v_exp_f32 v{s+8}, v{s+8}")
        for i in range(4): A(f"v_cvt_pk_bf16_f32 v{s+i}, v{s+2*i}, v{s+2*i+1}")
        for r in range(9, 12): A(f"v_exp_f32 v{s+r}, v{s+r}")
        if t == 0:
            for r in range(9): A(f"{os.environ.get('DSOP','ds_add_f32')} v7, v{O+r} offset:{AT_ACC + r*256}")
            A("s_mul_i32 s21, s22, 2304\ns_add_u32 s22, s22, 1\ns_and_b32 s22, s22, 7\nv_add_u32 v7, s21, v6")
        if t < 7: A(f"s_waitcnt vmcnt({15-2*t})")
        A(f"{MFMA} {vr(O,16)}, {vr(V+8*t,4)}, {vr(s,4)}, {'0' if t==0 else vr(O,16)}")
        for r in range(12, 16): A(f"v_exp_f32 v{s+r}, v{s+r}")
        for i in range(4): A(f"v_cvt_pk_bf16_f32 v{s+8+i}, v{s+8+2*i}, v{s+8+2*i+1}")
        if t == 7: A("s_sub_u32 s23, s23, 1\ns_cmp_lg_u32 s23, 0")
        else: A("s_nop 1")
        A(f"{MFMA} {vr(O,16)}, {vr(V+8*t+4,4)}, {vr(s+8,4)}, {vr(O,16)}")
    A(f"s_cbranch_scc1 {lp}")
    A("s_nop 7\ns_nop 3")
    for r in range(9): A(f"{os.environ.get('DSOP','ds_add_f32')} v7, v{O+r} offset:{AT_ACC + r*256}")
    A("s_waitcnt lgkmcnt(0)\ns_barrier")
    A(f"s_mul_i32 s21, {wv}, 2304\nv_add_u32 v7, s21, v6")
    for r in range(9): A(f"ds_read_b32 v{O+r}, v7 offset:{AT_ACC + r*256}")
    A("s_waitcnt lgkmcnt(0)")
    fin = A.label("at_fin")
    A(f"v_mul_f32 v8, 0, v{O}")
    for r in range(1, 8): A(f"v_fma_f32 v8, v{O+r}, 0, v8")
    A(f"v_add_f32 v8, v8, v{O+8}")
    A(f"s_mov_b32 s20, {hex(f32(2.0**-60))}\ns_mov_b32 s21, {hex(f32(2.0**120))}")
    A("v_cmp_le_f32 vcc, s20, v8\nv_cmp_ge_f32 s[28:29], s21, v8\ns_and_b64 vcc, vcc, s[28:29]\ns_andn2_b64 s[28:29], exec, vcc")
    if os.environ.get("FB") == "never": A(f"s_branch {fin}")
    A(f"s_cbranch_scc0 {fin}")
    C = 8; KF = 24; VF = V
    A(f"s_lshl_b32 s34, {wv}, 10\ns_add_u32 s34, s34, s14")
    A(f"buffer_load_dwordx4 {vr(Q,4)}, v2, s[24:27], s34 offen")
    A(f"s_lshl_b32 s33, s12, 16\ns_add_u32 s16, s33, {WS_K}\ns_mov_b32 s23, 64\nv_mov_b32 v28, 0xff800000")
    l1 = A.label("at_fb1")
    A(f"{l1}:")
    A(f"buffer_load_dwordx4 {vr(KF,4)}, v2, s[24:27], s16 offen\ns_waitcnt vmcnt(0)")
    A(f"{MFMA} {vr(S[0],16)}, {vr(KF,4)}, {vr(Q,4)}, 0\ns_nop 7\ns_nop 3")
    for i in range(8): A(f"v_max3_f32 v28, v{S[0]+2*i}, v{S[0]+2*i+1}, v28")
    A(f"s_add_u32 s16, s16, 1024\ns_sub_u32 s23, s23, 1\ns_cmp_lg_u32 s23, 0\ns_cbranch_scc1 {l1}")
    A("v_mov_b32 v29, v28\ns_nop 1\nv_permlane32_swap_b32 v28, v29\ns_nop 1\nv_max_f32 v28, v28, v29")
    for r in range(16): A(f"v_sub_f32 v{C+r}, 0, v28")
    for r in range(16): A(f"v_mov_b32 v{O+r}, 0")
    A(f"s_add_u32 s16, s33, {WS_K}\ns_add_u32 s17, s33, {WS_V}\ns_mov_b32 s23, 64")
    l2 = A.label("at_fb2")
    A(f"{l2}:")
    A(f"buffer_load_dwordx4 {vr(KF,4)}, v2, s[24:27], s16 offen")
    A("s_mov_b32 exec_lo, 0xffff\ns_mov_b32 exec_hi, 0xffff")
    A(f"buffer_load_dwordx4 {vr(VF,4)}, v3, s[24:27], s17 offen")
    A(f"buffer_load_dwordx4 {vr(VF+4,4)}, v3, s[24:27], s17 offen offset:512")
    A("s_mov_b64 exec, -1\ns_waitcnt vmcnt(0)")
    s = S[0]
    A(f"{MFMA} {vr(s,16)}, {vr(KF,4)}, {vr(Q,4)}, {vr(C,16)}\ns_nop 7\ns_nop 3")
    for r in range(16): A(f"v_exp_f32 v{s+r}, v{s+r}")
    A("s_nop 0")
    for i in range(4): A(f"v_cvt_pk_bf16_f32 v{s+i}, v{s+2*i}, v{s+2*i+1}")
    for i in range(4): A(f"v_cvt_pk_bf16_f32 v{s+8+i}, v{s+8+2*i}, v{s+8+2*i+1}")
    A("s_nop 1")
    A(f"{MFMA} {vr(O,16)}, {vr(VF,4)}, {vr(s,4)}, {vr(O,16)}")
    A(f"{MFMA} {vr(O,16)}, {vr(VF+4,4)}, {vr(s+8,4)}, {vr(O,16)}")
    A("s_nop 7\ns_nop 7")
    A(f"s_add_u32 s16, s16, 1024\ns_add_u32 s17, s17, 1024\ns_sub_u32 s23, s23, 1\ns_cmp_lg_u32 s23, 0\ns_cbranch_scc1 {l2}")
    A(f"{fin}:")
    A(f"v_rcp_f32 v8, v{O+8}")
    A(f"s_lshl_b32 s34, s13, 3\ns_add_u32 s34, s34, {wv}\ns_lshl_b32 s34, s34, 5\ns_add_u32 s34, s34, s12\ns_lshl_b32 s34, s34, 10\ns_add_u32 s34, s34, {WS_O}")
    for r in range(8): A(f"v_mul_f32 v{O+r}, v{O+r}, v8")
    for i in range(4): A(f"v_cvt_pk_bf16_f32 v{12+i}, v{O+2*i}, v{O+2*i+1}")
    A(f"buffer_store_dwordx4 v[12:15], v2, s[24:27], s34 offen")
    A("s_endpgm")

def gen_attn(A, name):
    khead(A, name)
    ex = A.label("at_exit")
    A(f"s_cmp_ge_u32 s2, 256\ns_cbranch_scc1 {ex}")
    A("s_load_dwordx2 s[10:11], s[0:1], 80\nv_readfirstlane_b32 s3, v0\nv_and_b32 v1, 63, v0\ns_lshr_b32 s3, s3, 6\ns_waitcnt lgkmcnt(0)")
    srd(A, 24, 10, WS_SIZE)
    gen_attn_role(A)
    A(f"{ex}:\ns_endpgm")
    return 160

FA_X = 0; FA_W = 65536; FA_SLOT = 6400; FA_UP = 3072 + 128; FA_NS = 3; FA_WAVE = FA_SLOT * FA_NS
FA_LDS = FA_W + 4 * FA_WAVE
def wgmap_ffn(A):
    A("""s_and_b32 s30, s2, 7
    s_lshr_b32 s31, s2, 3
    s_lshl_b32 s12, s30, 2
    s_and_b32 s32, s31, 3
    s_add_u32 s12, s12, s32
    s_lshr_b32 s13, s31, 2""")

def gen_ffa_role(A, wv, done, base=0):
    ACC = 64; XF = 16; WF = 32
    A(f"s_lshl_b32 s40, s12, 16\ns_lshl_b32 s41, {wv}, 14\ns_add_u32 s40, s40, s41\ns_add_u32 s41, s41, {base+FA_X}")
    A("v_lshlrev_b32 v2, 4, v1")
    for i in range(16):
        A(f"v_xor_b32 v{16+i}, {16*i}, v2")
    for i in range(16):
        A(f"s_add_u32 m0, s41, {i*1024}\ns_add_u32 s42, s40, {i*1024}")
        A(f"buffer_load_dwordx4 v{16+i}, s[16:19], s42 offen lds")
    A(f"s_lshl_b32 s14, s13, 2\ns_add_u32 s14, s14, {wv}\ns_mul_i32 s15, s14, 96")
    A("s_mov_b32 s45, 43691")
    for j in range(3):
        A(f"""v_add_u32 v8, {64*j}, v1
        v_mul_lo_u32 v9, v8, s45
        v_lshrrev_b32 v9, 18, v9
        v_mul_u32_u24 v10, 6, v9
        v_sub_u32 v10, v8, v10
        v_mul_u32_u24 v9, 2752, v9
        v_lshl_add_u32 v{3+j}, v10, 4, v9""")
    A(f"s_mul_i32 s43, {wv}, {FA_WAVE}\ns_add_u32 s43, s43, {base+FA_W}")
    def wload():
        for j in range(3):
            A(f"s_add_u32 m0, s46, {j*1024}\ns_nop 0\nbuffer_load_dwordx4 v{3+j}, s[20:23], s44 offen lds")
        for j in range(3):
            A(f"s_add_u32 m0, s46, {FA_UP+j*1024}\ns_nop 0\nbuffer_load_dwordx4 v{3+j}, s[36:39], s44 offen lds")
        A(f"s_add_u32 s44, s44, {32*2752}\ns_add_u32 s46, s46, {FA_SLOT}\ns_cmp_eq_u32 s46, s47\ns_cselect_b32 s46, s43, s46")
    A(f"s_mov_b32 s44, s15\ns_mov_b32 s46, s43\ns_add_u32 s47, s43, {FA_WAVE}")
    for c in range(FA_NS): wload()
    A(f"""v_lshrrev_b32 v8, 5, v1
    v_and_b32 v9, 15, v1
    v_lshrrev_b32 v10, 2, v9
    v_lshl_add_u32 v10, v8, 3, v10
    v_mul_u32_u24 v10, 96, v10
    v_and_b32 v11, 3, v1
    v_lshl_add_u32 v10, v11, 3, v10
    v_bfe_u32 v11, v1, 4, 1
    v_mul_u32_u24 v11, {FA_UP}, v11
    v_add_u32 v6, v10, v11
    v_xor_b32 v9, v9, v8
    v_lshlrev_b32 v9, 4, v9
    v_and_b32 v10, 31, v1
    v_lshl_add_u32 v7, v10, 10, v9""")
    if base + FA_X: A(f"v_add_u32 v7, {base+FA_X}, v7")
    for r in range(96): A(f"v_mov_b32 v{ACC+r}, 0")
    A(f"s_waitcnt vmcnt({6*FA_NS})\ns_barrier")
    A(f"s_cmp_ge_u32 s14, 29\ns_cbranch_scc1 {done}")
    A("s_mov_b32 s48, s43\ns_mov_b32 s49, 0")
    lp = A.label("fa_loop")
    A(f"{lp}:")
    A("v_add_u32 v8, s48, v6\nv_xor_b32 v9, s49, v7\nv_xor_b32 v10, 32, v9")
    A(f"s_waitcnt vmcnt({6*(FA_NS-1)})")
    for ks in range(2):
        for tt in range(2):
            A(f"ds_read_b128 {vr(XF+8*ks+4*tt,4)}, v{9+ks} offset:{32768*tt}")
        for t in range(3):
            for p in range(2):
                A(f"ds_read_b64_tr_b16 {vr(WF+12*ks+4*t+2*p,2)}, v8 offset:{(16*ks+4*p)*96+32*t}")
        if ks == 0: A("s_waitcnt lgkmcnt(7)")
    A(f"s_add_u32 s48, s48, {FA_SLOT}\ns_cmp_eq_u32 s48, s47\ns_cselect_b32 s48, s43, s48\ns_add_u32 s49, s49, 64")
    A("s_waitcnt lgkmcnt(8)")
    for t in range(3):
        for tt in range(2):
            a = vr(ACC + 48*tt + 16*t, 16)
            A(f"{MFMA} {a}, {vr(WF+4*t,4)}, {vr(XF+4*tt,4)}, {a}")
    A("s_waitcnt lgkmcnt(0)")
    wload()
    for t in range(3):
        for tt in range(2):
            a = vr(ACC + 48*tt + 16*t, 16)
            A(f"{MFMA} {a}, {vr(WF+12+4*t,4)}, {vr(XF+8+4*tt,4)}, {a}")
    A(f"s_cmp_lt_u32 s49, 1024\ns_cbranch_scc1 {lp}")
    c0 = 2 * 0.7978845608028654 * LOG2E
    A(f"s_mov_b32 s50, {hex(f32(-c0))}\ns_mov_b32 s51, {hex(f32(-c0*0.044715))}")
    A(f"s_lshl_b32 s40, s12, 1\ns_mul_i32 s40, s40, 86\ns_mul_i32 s41, s14, 3\ns_add_u32 s40, s40, s41\ns_lshl_b32 s40, s40, 10\ns_add_u32 s40, s40, {WS_H}")
    A("v_mov_b32 v15, s50\ns_nop 4")
    for t in range(3):
        if t == 2: A(f"s_cmp_eq_u32 s14, 28\ns_cbranch_scc1 {done}")
        for tt in range(2):
            a = ACC + 48*tt + 16*t; T = 16
            for r in range(8): A(f"v_mul_f32 v{T+r}, v{a+r}, v{a+r}")
            for r in range(8): A(f"v_fma_f32 v{T+r}, v{T+r}, s51, v15")
            for r in range(8): A(f"v_mul_f32 v{T+r}, v{T+r}, v{a+r}")
            for r in range(8): A(f"v_exp_f32 v{T+r}, v{T+r}")
            for r in range(8): A(f"v_mul_f32 v{a+r}, v{a+r}, v{a+8+r}")
            for r in range(8): A(f"v_add_f32 v{T+r}, 1.0, v{T+r}")
            for r in range(8): A(f"v_rcp_f32 v{T+r}, v{T+r}")
            A("s_nop 0")
            for r in range(8): A(f"v_mul_f32 v{a+r}, v{a+r}, v{T+r}")
            for i in range(4): A(f"v_cvt_pk_bf16_f32 v{a+8+i}, v{a+2*i}, v{a+2*i+1}")
            A(f"s_add_u32 s41, s40, {(tt*86+t)*1024}")
            A(f"buffer_store_dwordx4 {vr(a+8,4)}, v2, s[24:27], s41 offen")

def gen_ffa(A, name):
    khead(A, name)
    ex = A.label("fa_exit")
    A(f"s_cmp_ge_u32 s2, 256\ns_cbranch_scc1 {ex}")
    A("s_load_dwordx2 s[4:5], s[0:1], 0\ns_load_dwordx4 s[8:11], s[0:1], 32\ns_load_dwordx2 s[6:7], s[0:1], 80")
    A("v_readfirstlane_b32 s3, v0\nv_and_b32 v1, 63, v0\ns_lshr_b32 s3, s3, 6")
    wgmap_ffn(A)
    A("s_waitcnt lgkmcnt(0)")
    srd(A, 16, 4, 2048*1024); srd(A, 20, 8, 512*2752); srd(A, 36, 10, 512*2752); srd(A, 24, 6, WS_SIZE)
    gen_ffa_role(A, "s3", ex)
    A(f"{ex}:\ns_waitcnt vmcnt(0)\ns_endpgm")
    return 160

FB_NS = 4; FB_WAVE = 4096 * FB_NS; FB_LDS = 4 * FB_WAVE
def gen_down_role(A, wv, kind, base=0):
    nks = 86 if kind == "B" else 32
    nch = nks // 2; act = WS_H if kind == "B" else WS_O
    per = (nch + 3) // 4
    ACC = 96; HF = 32; WF = 16
    A("v_lshlrev_b32 v2, 4, v1")
    A("""v_lshrrev_b32 v8, 3, v1
    v_bfe_u32 v9, v1, 4, 1
    v_lshlrev_b32 v9, 1, v9
    v_and_b32 v10, 7, v1
    v_xor_b32 v9, v9, v10
    v_lshlrev_b32 v9, 4, v9
    v_lshl_add_u32 v3, v8, 10, v9""")
    A(f"""s_lshr_b32 s44, {wv}, 1
    s_lshl_b32 s45, s12, 1
    s_add_u32 s40, s45, s44
    s_xor_b32 s41, s40, 1
    s_mul_i32 s40, s40, {nks*1024}
    s_mul_i32 s41, s41, {nks*1024}
    s_lshl_b32 s45, {wv}, 11
    s_add_u32 s45, s45, {act}
    s_add_u32 s40, s40, s45
    s_add_u32 s41, s41, s45
    s_lshl_b32 s42, {wv}, 15
    s_lshl_b32 s45, s13, 7
    s_add_u32 s42, s42, s45
    s_mul_i32 s43, {wv}, {FB_WAVE}""")
    if base: A(f"s_add_u32 s43, s43, {base}")
    def load(i):
        sl = i % FB_NS
        for j in range(4):
            A(f"s_add_u32 m0, s43, {sl*4096 + j*1024}\ns_add_u32 s45, s42, {i*131072 + j*8192}")
            A("buffer_load_dwordx4 v3, s[20:23], s45 offen lds")
        for tt in range(2):
            A(f"s_add_u32 s45, s{40+tt}, {i*8192}")
            for ks in range(2):
                A(f"buffer_load_dwordx4 {vr(HF+16*sl+8*ks+4*tt,4)}, v2, s[24:27], s45 offen offset:{ks*1024}")
    short = (nch % 4 != 0)
    lastlab = A.label("dn_red")
    npre = min(FB_NS, per)
    for i in range(npre): load(i)
    A(f"""v_lshrrev_b32 v8, 5, v1
    v_bfe_u32 v9, v1, 2, 2
    v_lshl_add_u32 v8, v8, 2, v9
    v_lshlrev_b32 v8, 7, v8
    v_and_b32 v10, 1, v1
    v_lshl_add_u32 v8, v10, 6, v8
    v_bfe_u32 v10, v1, 4, 1
    v_lshl_add_u32 v8, v10, 4, v8
    v_bfe_u32 v10, v1, 1, 1
    v_lshl_add_u32 v8, v10, 3, v8
    v_bfe_u32 v10, v1, 3, 1
    s_and_b32 s45, {wv}, 1
    v_xor_b32 v10, s45, v10
    v_lshl_add_u32 v8, v10, 5, v8
    v_add_u32 v4, s43, v8
    v_xor_b32 v5, 32, v4""")
    for i in range(per):
        sl = i % FB_NS
        issued = min(per, i + FB_NS) if i else npre
        issued = min(per, npre + max(0, i - 0)) if False else issued
        if i == per - 1 and short:
            A(f"s_cmp_ge_u32 {wv}, {nch % 4}\ns_cbranch_scc1 {lastlab}")
        A(f"s_waitcnt vmcnt({8*(ISS(i,per,npre,short) )})")
        for ks in range(2):
            for j in range(2):
                for p in range(2):
                    A(f"ds_read_b64_tr_b16 {vr(WF+8*ks+4*j+2*p,2)}, v{4+j} offset:{sl*4096 + (16*ks+8*p)*128}")
        A("s_waitcnt lgkmcnt(4)")
        for ks in range(2):
            if ks == 1: A("s_waitcnt lgkmcnt(0)")
            for tt in range(2):
                for j in range(2):
                    a = vr(ACC + 32*tt + 16*j, 16)
                    A(f"{MFMA} {a}, {vr(WF+8*ks+4*j,4)}, {vr(HF+16*sl+8*ks+4*tt,4)}, {'0' if (i==0 and ks==0) else a}")
        if i + FB_NS < per: load(i + FB_NS)
    A(f"{lastlab}:")
    A("s_waitcnt vmcnt(0)")
    A(f"s_lshl_b32 s45, s12, 1\ns_add_u32 s45, s45, s44\ns_lshl_b32 s46, s45, 7\ns_add_u32 s46, s46, {WS_G}")
    A("v_and_b32 v8, 31, v1\nv_lshlrev_b32 v9, 2, v8\nbuffer_load_dword v6, v9, s[24:27], s46 offen")
    A(f"s_lshl_b32 s47, s12, 3\ns_add_u32 s47, s47, s13\ns_lshl_b32 s47, s47, 2\ns_add_u32 s47, s47, {wv}\ns_lshl_b32 s47, s47, 11\ns_add_u32 s47, s47, {WS_P}")
    if kind == "O":
        A("buffer_load_dwordx4 v[16:19], v2, s[24:27], s47 offen\nbuffer_load_dwordx4 v[20:23], v2, s[24:27], s47 offen offset:1024")
    A("s_barrier")
    for q in range(1, 4):
        A(f"s_xor_b32 s46, {wv}, {q}\ns_mul_i32 s46, s46, {FB_WAVE}\nv_add_u32 v10, s46, v2")
        for k in range(4):
            A(f"ds_write_b128 v10, {vr(ACC+16*q+4*k,4)} offset:{base + (q-1)*4096 + k*1024}")
    A("v_add_u32 v10, s43, v2\ns_waitcnt lgkmcnt(0)\ns_barrier")
    for q in range(1, 4):
        for k in range(4):
            A(f"ds_read_b128 {vr(ACC+16*q+4*k,4)}, v10 offset:{(q-1)*4096 + k*1024}")
    for q in range(1, 4):
        A(f"s_waitcnt lgkmcnt({12-4*q})")
        for r in range(16): A(f"v_add_f32 v{ACC+r}, v{ACC+r}, v{ACC+16*q+r}")
    A("s_waitcnt vmcnt(0)")
    if kind == "B":
        A("v_sub_f32 v6, 1.0, v6")
        for r in range(16): A(f"v_mul_f32 v{ACC+r}, v{ACC+r}, v6")
        for i in range(8): A(f"v_cvt_pk_bf16_f32 v{16+i}, v{ACC+2*i}, v{ACC+2*i+1}")
        A("buffer_store_dwordx4 v[16:19], v2, s[24:27], s47 offen\nbuffer_store_dwordx4 v[20:23], v2, s[24:27], s47 offen offset:1024")
    else:
        for i in range(8):
            A(f"v_lshlrev_b32 v24, 16, v{16+i}\nv_and_b32 v25, 0xffff0000, v{16+i}")
            A(f"v_fma_f32 v{ACC+2*i}, v{ACC+2*i}, v6, v24\nv_fma_f32 v{ACC+2*i+1}, v{ACC+2*i+1}, v6, v25")
        for i in range(8): A(f"v_cvt_pk_bf16_f32 v{16+i}, v{ACC+2*i}, v{ACC+2*i+1}")
        A(f"""v_lshrrev_b32 v9, 5, v1
        v_lshlrev_b32 v9, 6, v9
        v_lshl_add_u32 v9, v8, 10, v9
        s_lshl_b32 s45, s45, 15
        s_lshl_b32 s46, s13, 7
        s_add_u32 s45, s45, s46
        s_and_b32 s46, {wv}, 1
        s_lshl_b32 s46, s46, 5
        s_add_u32 s45, s45, s46""")
        A("buffer_store_dwordx4 v[16:19], v9, s[16:19], s45 offen\nbuffer_store_dwordx4 v[20:23], v9, s[16:19], s45 offen offset:16")

def ISS(i, per, npre, short):
    issued = min(per, npre + i)
    return issued - (i + 1)

def gen_down(A, name, kind):
    khead(A, name)
    ex = A.label("dn_exit")
    A(f"s_cmp_ge_u32 s2, 256\ns_cbranch_scc1 {ex}")
    A(f"s_load_dwordx2 s[4:5], s[0:1], {48 if kind=='B' else 16}\ns_load_dwordx2 s[6:7], s[0:1], 80\ns_load_dwordx2 s[8:9], s[0:1], 64")
    A("v_readfirstlane_b32 s3, v0\nv_and_b32 v1, 63, v0\ns_lshr_b32 s3, s3, 6")
    wgmap_ffn(A)
    A("s_waitcnt lgkmcnt(0)")
    srd(A, 20, 4, (1376 if kind == "B" else 512) * 1024); srd(A, 24, 6, WS_SIZE); srd(A, 16, 8, 2048*1024)
    gen_down_role(A, "s3", kind)
    A(f"{ex}:\ns_endpgm")
    return 160

def header():
    ref = open("cdna_kernels/" + NAME + ".s.ref").read().split("\n")
    return [l for l in ref if l.startswith(";") and "@launch" not in l and "Override" not in l and "grid=ceil" not in l]

def build(launches):
    A = Asm()
    for l in header(): A(l)
    for (n, g, blk, lds, fn) in launches:
        A(f"; @launch kernel={n} grid=({g},1,1) block=({blk},1,1) lds={lds}")
    A('.amdgcn_target "amdgcn-amd-amdhsa--gfx950"\n.text')
    descs = []
    for (n, g, blk, lds, fn) in launches:
        st = len(A.L)
        v = fn(A, n)
        errs = check_hazards(A.L[st:])
        for e in errs: print("HAZARD", n, e, file=sys.stderr)
        descs.append((n, v))
    A('.section .rodata,"a"')
    for n, v in descs: kdesc(A, n, v)
    return A.text()

if __name__ == "__main__":
    L = [("k1_kernel", 256, 512, K1_LDS, gen_k1),
         ("ffa_kernel", 256, 256, FA_LDS, gen_ffa),
         ("attn_kernel", 256, 512, AT_LDS, gen_attn),
         ("ffb_kernel", 256, 256, FB_LDS, lambda A, n: gen_down(A, n, "B")),
         ("out_kernel", 256, 256, FB_LDS, lambda A, n: gen_down(A, n, "O"))]
    def gen_empty(A, n):
        khead(A, n); A("s_endpgm"); return 8
    pre = int(os.environ.get("PRE", 0)); post = int(os.environ.get("POST", 0))
    L = [(f"e{i}_kernel", 256, 256, 0, gen_empty) for i in range(pre)] + L + [(f"f{i}_kernel", 256, 256, 0, gen_empty) for i in range(post)]
    out = sys.argv[1] if len(sys.argv) > 1 else "cdna_kernels/" + NAME + ".s"
    open(out, "w").write(build(L))
```

```python
import sys, math, struct, os
from asmlib import *

NAME = "gated_mix__mha_block__geglu_ffn__prompt"
WS_Q = 0; WS_K = 2 << 20; WS_V = 4 << 20; WS_O = 6 << 20; WS_H = 8 << 20; WS_P = 14 << 20; WS_G = 16 << 20
WS_SIZE = (16 << 20) + 8192
def f32(x): return struct.unpack("<I", struct.pack("<f", x))[0]
LOG2E = 1.4426950408889634
MFMA = "v_mfma_f32_32x32x16_bf16"

def srd(A, d, b, size):
    A(f"s_mov_b32 s{d}, s{b}\ns_mov_b32 s{d+1}, s{b+1}\ns_mov_b32 s{d+2}, {size}\ns_mov_b32 s{d+3}, 0x20000")

PROF = int(os.environ.get("PROF", 0))
WS_T = 17 << 20
if PROF: WS_SIZE = 18 << 20
KIDX = [0]
def stamp(A, i, wait=True):
    if PROF:
        A(f"{'s_memrealtime' if PROF == 1 else 's_memtime'} s[{80+2*i}:{81+2*i}]")
        if wait: A("s_waitcnt lgkmcnt(0)")
def prof_end(A, n=6, wv="s3"):
    if not PROF: return
    A("s_waitcnt vmcnt(0)")
    stamp(A, 7)
    A(f"s_lshl_b32 s78, s2, 4\ns_add_u32 s78, s78, {wv}\ns_lshl_b32 s78, s78, 5\ns_add_u32 s78, s78, {WS_T + KIDX[0]*256*16*32}")
    A("s_mov_b64 exec, 1\nv_mov_b32 v0, 0")
    for i in range(8): A(f"v_mov_b32 v{4+i}, s{80+2*i}")
    A("buffer_store_dwordx4 v[4:7], v0, s[24:27], s78 offen\nbuffer_store_dwordx4 v[8:11], v0, s[24:27], s78 offen offset:16")
def prof_init(A):
    if PROF:
        for i in range(1, 8): A(f"s_mov_b32 s{80+2*i}, 0")
        stamp(A, 0, False)

def khead(A, name):
    A(f".globl {name}\n.p2align 8\n.type {name},@function\n{name}:")

def kdesc(A, name, vgpr, sgpr=96):
    acc = (vgpr + 3) // 4 * 4
    A(".p2align 6")
    A(f".amdhsa_kernel {name}")
    for l in (f".amdhsa_next_free_vgpr {vgpr}", f".amdhsa_next_free_sgpr {sgpr}", f".amdhsa_accum_offset {acc}",
              ".amdhsa_group_segment_fixed_size 0", ".amdhsa_kernarg_size 88", ".amdhsa_user_sgpr_count 2",
              ".amdhsa_user_sgpr_kernarg_segment_ptr 1", ".amdhsa_system_sgpr_workgroup_id_x 1"):
        A(l)
    A(".end_amdhsa_kernel")

K1_SLOT = 28672; K1_NS = 5; K1_GW = K1_SLOT * K1_NS; K1_LDS = K1_GW + 1024
def gen_k1(A, name):
    khead(A, name)
    ex = A.label("k1_exit"); hl = A.label("k1_helper")
    A(f"s_cmp_ge_u32 s2, 256\ns_cbranch_scc1 {ex}"); prof_init(A)
    A("s_load_dwordx4 s[4:7], s[0:1], 0\ns_load_dwordx2 s[8:9], s[0:1], 56\ns_load_dwordx2 s[10:11], s[0:1], 80")
    A("v_readfirstlane_b32 s3, v0\nv_and_b32 v1, 63, v0\ns_lshr_b32 s3, s3, 6")
    A("""s_and_b32 s30, s2, 7
    s_lshr_b32 s31, s2, 3
    s_and_b32 s12, s30, 1
    s_lshl_b32 s12, s12, 3
    s_and_b32 s33, s31, 7
    s_add_u32 s12, s12, s33
    s_lshr_b32 s13, s30, 1
    s_lshl_b32 s13, s13, 2
    s_lshr_b32 s34, s31, 3
    s_add_u32 s13, s13, s34
    s_lshl_b32 s34, s34, 1
    s_add_u32 s14, s33, s34
    s_and_b32 s15, s3, 3""")
    A("v_and_b32 v5, 31, v1\nv_lshrrev_b32 v6, 5, v1")
    A("""v_lshrrev_b32 v7, 1, v5
    v_and_b32 v7, 7, v7
    v_xor_b32 v7, v7, v6
    v_lshlrev_b32 v7, 4, v7
    v_lshlrev_b32 v8, 7, v5
    v_add_u32 v7, v7, v8
    s_lshl_b32 s32, s15, 12
    v_add_u32 v16, s32, v7""")
    for ks in range(1, 4): A(f"v_xor_b32 v{16+ks}, {32*ks}, v16")
    for j in (1, 2):
        for ks in range(4): A(f"v_add_u32 v{16+4*j+ks}, {j*2*K1_SLOT}, v{16+ks}")
    A("s_waitcnt lgkmcnt(0)")
    srd(A, 16, 4, 2048 * 1024); srd(A, 20, 6, 512 * 3072); srd(A, 24, 10, WS_SIZE); srd(A, 36, 8, 1024)
    A(f"s_cmp_ge_u32 s3, 4\ns_cbranch_scc1 {hl}")
    waits = [4, 3, 3, 3, 3, 2, 1, 0]
    A("""v_lshrrev_b32 v8, 3, v1
    v_lshlrev_b32 v8, 10, v8
    v_lshrrev_b32 v9, 4, v1
    v_and_b32 v10, 7, v1
    v_xor_b32 v9, v9, v10
    v_lshlrev_b32 v9, 4, v9
    v_add_u32 v2, v8, v9
    v_xor_b32 v3, 64, v2
    s_lshl_b32 s40, s12, 17
    s_lshl_b32 s41, s15, 15
    s_add_u32 s40, s40, s41""")
    def xload(c):
        slot = c % K1_NS
        A(f"s_add_u32 s42, s14, {c}\ns_and_b32 s42, s42, 7\ns_lshl_b32 s42, s42, 7\ns_add_u32 s42, s42, s40")
        for i in range(4):
            A(f"s_add_u32 m0, s32, {slot*K1_SLOT + i*1024}")
            if i: A("s_add_u32 s42, s42, 8192")
            else: A("s_nop 0")
            A(f"buffer_load_dwordx4 v{2 + (i&1)}, s[16:19], s42 offen lds")
    for c in range(K1_NS): xload(c)
    A("""v_and_b32 v8, 15, v1
    v_lshrrev_b32 v9, 2, v8
    v_lshl_add_u32 v9, v6, 3, v9
    v_mul_u32_u24 v9, 192, v9
    v_and_b32 v10, 3, v1
    v_lshl_add_u32 v9, v10, 3, v9
    v_bfe_u32 v10, v1, 4, 1
    v_lshl_add_u32 v9, v10, 5, v9
    v_add_u32 v28, 16384, v9""")
    A(f"v_add_u32 v29, {2*K1_SLOT}, v28\nv_add_u32 v30, {4*K1_SLOT}, v28")
    ACC = 64; FR = 32
    def reads(c, ks, b):
        slot = c % K1_NS; j = slot // 2; so = (slot % 2) * K1_SLOT
        f = FR + 16 * b
        A(f"ds_read_b128 {vr(f,4)}, v{16+4*j+ks} offset:{so}")
        for t in range(3):
            for p in range(2):
                A(f"ds_read_b64_tr_b16 {vr(f+4+4*t+2*p,2)}, v{28+j} offset:{so + (16*ks+4*p)*192 + 64*t}")
    def mf(b, first):
        f = FR + 16 * b
        for t in range(3):
            acc = vr(ACC + 16 * t, 16); c = "0" if first else acc
            if t < 2: A(f"{MFMA} {acc}, {vr(f+4+4*t,4)}, {vr(f,4)}, {c}")
            else:     A(f"{MFMA} {acc}, {vr(f,4)}, {vr(f+4+4*t,4)}, {c}")
    for c in range(8):
        A(f"s_waitcnt vmcnt({4*waits[c]})\ns_barrier")
        if c in (0, 1, 4, 7): stamp(A, {0: 1, 1: 2, 4: 3, 7: 4}[c])
        reads(c, 0, 0)
        if 1 <= c <= 3: xload(c + 4)
        for ks in range(4):
            if ks < 3:
                reads(c, ks + 1, (ks + 1) & 1); A("s_waitcnt lgkmcnt(7)")
            else:
                A("s_waitcnt lgkmcnt(0)")
            mf(ks & 1, c == 0 and ks == 0)
    stamp(A, 5)
    A(f"s_mov_b32 s44, {hex(f32(0.25*LOG2E))}\ns_cmp_lt_u32 s13, 8\ns_cselect_b32 s44, s44, 1.0")
    A("s_lshl_b32 s45, s12, 2\ns_add_u32 s45, s45, s15")
    A("s_lshl_b32 s46, s13, 18\ns_lshl_b32 s47, s45, 10\ns_add_u32 s46, s46, s47")
    A("s_lshl_b32 s48, s13, 17\ns_add_u32 s48, s48, s47")
    A(f"s_add_u32 s48, s48, {WS_V}")
    A("v_lshlrev_b32 v2, 4, v1")
    A("""v_and_b32 v8, 15, v1
    v_lshl_add_u32 v8, v6, 4, v8
    v_lshlrev_b32 v3, 4, v8
    v_bfe_u32 v10, v1, 4, 1
    v_lshl_add_u32 v3, v10, 16, v3""")
    A("s_nop 4")
    for t in range(2):
        for r in range(16): A(f"v_mul_f32 v{ACC+16*t+r}, s44, v{ACC+16*t+r}")
        for m in range(2):
            d = 32 + 8 * t + 4 * m
            for i in range(4): A(f"v_cvt_pk_bf16_f32 v{d+i}, v{ACC+16*t+8*m+2*i}, v{ACC+16*t+8*m+2*i+1}")
            A(f"buffer_store_dwordx4 {vr(d,4)}, v2, s[24:27], s46 offen")
            if not (t == 1 and m == 1): A("s_add_u32 s46, s46, 65536")
    for m in range(2):
        d = 48 + 4 * m
        for i in range(4): A(f"v_cvt_pk_bf16_f32 v{d+i}, v{ACC+32+8*m+2*i}, v{ACC+32+8*m+2*i+1}")
        A(f"buffer_store_dwordx4 {vr(d,4)}, v3, s[24:27], s48 offen offset:{512*m}")
    stamp(A, 6); prof_end(A)
    A("s_endpgm")
    A(f"{hl}:")
    A(f"v_lshlrev_b32 v8, 4, v1\ns_mov_b32 m0, {K1_GW}\ns_mul_i32 s41, s15, 192")
    A("buffer_load_dwordx4 v8, s[36:39], 0 offen lds")
    A("s_lshl_b32 s42, s13, 7\ns_lshl_b32 s43, s13, 6\ns_add_u32 s43, s43, 1920\ns_mov_b32 s45, 43691")
    for i in range(3):
        A(f"""v_add_u32 v8, s41, v1
        v_add_u32 v8, {64*i}, v8
        v_mul_lo_u32 v9, v8, s45
        v_lshrrev_b32 v9, 19, v9
        v_mul_u32_u24 v10, 12, v9
        v_sub_u32 v10, v8, v10
        v_mov_b32 v11, s42
        v_mov_b32 v12, s43
        v_cmp_le_u32 vcc, 8, v10
        v_mul_u32_u24 v9, 3072, v9
        v_lshl_add_u32 v9, v10, 4, v9
        v_cndmask_b32 v11, v11, v12, vcc
        v_add_u32 v{2+i}, v9, v11""")
    A("s_mul_i32 s41, s15, 3072\ns_add_u32 s41, s41, 16384")
    def wload(c):
        slot = c % K1_NS
        A(f"s_add_u32 s42, s14, {c}\ns_and_b32 s42, s42, 7\ns_mul_i32 s42, s42, {64*3072}")
        for i in range(3):
            A(f"s_add_u32 m0, s41, {slot*K1_SLOT + i*1024}\ns_nop 0")
            A(f"buffer_load_dwordx4 v{2+i}, s[20:23], s42 offen lds")
    for c in range(K1_NS): wload(c)
    A(f"v_lshlrev_b32 v8, 4, v6\nv_add_u32 v8, {K1_GW}, v8")
    for c in range(8):
        A(f"s_waitcnt vmcnt({3*waits[c]})\ns_barrier")
        if 1 <= c <= 3: wload(c + 4)
        sk = A.label("k1_nog")
        A(f"s_cmp_lg_u32 s13, 0\ns_cbranch_scc1 {sk}")
        slot = c % K1_NS; j = slot // 2; so = (slot % 2) * K1_SLOT
        A(f"s_add_u32 s42, s14, {c}\ns_and_b32 s42, s42, 7\ns_lshl_b32 s42, s42, 7\nv_add_u32 v9, s42, v8")
        for ks in range(4):
            A(f"ds_read_b128 {vr(32+8*ks,4)}, v{16+4*j+ks} offset:{so}")
            A(f"ds_read_b128 {vr(36+8*ks,4)}, v9 offset:{32*ks}")
        A("s_waitcnt lgkmcnt(0)")
        for ks in range(4):
            A(f"{MFMA} {vr(64,16)}, {vr(36+8*ks,4)}, {vr(32+8*ks,4)}, {'0' if (c==0 and ks==0) else vr(64,16)}")
        A(f"{sk}:")
    A(f"s_cmp_lg_u32 s13, 0\ns_cbranch_scc1 {ex}")
    A("s_lshl_b32 s45, s12, 2\ns_add_u32 s45, s45, s15\ns_lshl_b32 s45, s45, 7")
    A(f"s_add_u32 s45, s45, {WS_G}\nv_lshlrev_b32 v2, 2, v5\ns_nop 7")
    A(f"v_mul_f32 v64, {hex(f32(-LOG2E))}, v64\nv_exp_f32 v64, v64\ns_nop 0\nv_add_f32 v64, 1.0, v64\nv_rcp_f32 v64, v64\ns_nop 0")
    A("buffer_store_dword v64, v2, s[24:27], s45 offen")
    A(f"{ex}:\ns_endpgm")
    return 112

AT_BLK = 5120
AT_LDS = 8 * AT_BLK
AK = 8; AV = 40; AS = [104, 120]; AP = 136; AO = 144; AQ = [160, 164]
GSCALE = int(os.environ.get("GSCALE", 0))
PRIO = int(os.environ.get("PRIO", 1))
def attn_map(A):
    A("""s_and_b32 s30, s2, 7
    s_lshr_b32 s31, s2, 3
    s_lshl_b32 s12, s30, 2
    s_lshr_b32 s32, s31, 3
    s_add_u32 s12, s12, s32
    s_and_b32 s13, s31, 7""")

def gen_attn_role(A, wv="s3", base=0, sc=""):
    K, V, S, P, O, Q = AK, AV, AS, AP, AO, AQ
    AD = [4, 5, 0, 7]
    attn_map(A)
    A(f"v_lshlrev_b32 v2, 4, v1\ns_and_b32 s38, {wv}, 3\ns_lshr_b32 s39, {wv}, 2")
    A(f"s_mul_i32 s22, s39, {4*AT_BLK}\ns_add_u32 s22, s22, {base}")
    A(f"v_mov_b64 {vr(O,2)}, 0\nv_mov_b64 {vr(O+2,2)}, 0")
    for j in range(4):
        A(f"s_add_u32 s23, s38, {j}\ns_and_b32 s23, s23, 3\ns_mul_i32 s23, s23, {AT_BLK}\ns_add_u32 s23, s23, s22\nv_add_u32 v{AD[j]}, s23, v2")
    A(f"ds_write_b128 v{AD[0]}, {vr(O,4)}")
    A(f"""s_lshl_b32 s33, s12, 16
    s_lshl_b32 s14, s13, 13
    s_add_u32 s14, s14, s33
    s_lshl_b32 s15, s38, 1
    s_lshl_b32 s16, {wv}, 13
    s_add_u32 s16, s16, s33
    s_add_u32 s17, s16, {WS_V}
    s_add_u32 s16, s16, {WS_K}
    s_add_u32 s18, s16, 4096
    s_add_u32 s19, s17, 4096""")
    def kload(t): A(f"buffer_load_dwordx4 {vr(K+4*t,4)}, v2, s[24:27], {'s16' if t<4 else 's18'} offen offset:{(t&3)*1024}{sc}")
    def vload(t, m): A(f"buffer_load_dwordx4 {vr(V+8*t+4*m,4)}, v3, s[24:27], {'s17' if t<4 else 's19'} offen offset:{(t&3)*1024+m*512}{sc}")
    def qload(it):
        A(f"s_add_u32 s34, s15, {it}\ns_and_b32 s34, s34, 7\ns_xor_b32 s34, s34, s39\ns_lshl_b32 s34, s34, 10\ns_add_u32 s34, s34, s14")
        A(f"buffer_load_dwordx4 {vr(Q[it&1],4)}, v2, s[24:27], s34 offen{sc}")
    A("s_add_u32 s35, s15, 7\ns_and_b32 s35, s35, 7\ns_xor_b32 s35, s35, s39\ns_lshl_b32 s36, s13, 3\ns_add_u32 s35, s35, s36")
    A(f"""v_lshrrev_b32 v{P}, 5, v1
    v_and_b32 v{P+1}, 15, v1
    v_lshl_add_u32 v3, v{P}, 4, v{P+1}
    v_lshlrev_b32 v3, 4, v3
    v_and_b32 v{P}, 27, v1
    v_cmp_eq_u32 vcc, 16, v{P}
    s_mov_b32 s20, 0xffff
    s_mov_b32 s21, 0xffff
    v_mov_b32 v{P}, 0x3f803f80
    v_cndmask_b32 v{P}, 0, v{P}, vcc
    v_mov_b32 v{P+1}, v{P}""")
    nb = A.label("at_nb"); nb2 = A.label("at_nb2")
    if PRIO: A("s_setprio 3")
    A(f"s_waitcnt lgkmcnt(0)\ns_cmp_eq_u32 s39, 0\ns_cbranch_scc1 {nb}\ns_barrier\n{nb}:")
    if GSCALE:
        A(f"s_lshl_b32 s36, s35, 7\ns_add_u32 s36, s36, {WS_G}\nv_and_b32 v6, 31, v1\nv_lshlrev_b32 v6, 2, v6")
        A(f"buffer_load_dword v6, v6, s[24:27], s36 offen{sc}")
    qload(0); kload(0); kload(1)
    for t in range(8):
        for r in range(0, 8, 2): A(f"v_mov_b64 {vr(V+8*t+r,2)}, {vr(P,2)}")
        A("s_mov_b64 exec, s[20:21]")
        vload(t, 0); vload(t, 1)
        A("s_mov_b64 exec, -1")
        if t < 6: kload(t + 2)
    qload(1)
    A(f"s_cmp_eq_u32 s39, 1\ns_cbranch_scc1 {nb2}\ns_barrier\n{nb2}:")
    if PRIO: A("s_setprio 0")
    A("s_waitcnt vmcnt(24)"); stamp(A, 1)
    A(f"{MFMA} {vr(S[0],16)}, {vr(K,4)}, {vr(Q[0],4)}, 0")
    A("s_nop 7\ns_nop 3")
    retries = []
    def rd(D, ad, e):
        return [f"ds_read_b64 {vr(D+8,2)}, v{ad} offset:{8*e}", f"ds_read_b128 {vr(D,4)}, v{ad} offset:{1024+2048*e}", f"ds_read_b128 {vr(D+4,4)}, v{ad} offset:{2048+2048*e}"]
    def chk(D, ad, e, tag):
        r = A.label("at_retry"); b = A.label("at_back")
        retries.append((r, b, D, ad, e, tag))
        A(f"s_waitcnt lgkmcnt(0)\nv_cmp_ne_u32 vcc, {tag}, v{D+9}\ns_cbranch_vccnz {r}\n{b}:")
    def tile(t, it):
        s = S[t & 1]; sn = S[(t + 1) & 1]
        E = lambda r: f"v_exp_f32 v{s+r}, v{s+r}"
        C0 = [f"v_cvt_pk_bf16_f32 v{P+i}, v{s+2*i}, v{s+2*i+1}" for i in range(4)]
        C1 = [f"v_cvt_pk_bf16_f32 v{P+4+i}, v{s+8+2*i}, v{s+8+2*i+1}" for i in range(4)]
        C1p = f"v_cvt_pk_bf16_f32 v{P+7}, v{sn+14}, v{sn+15}"
        pv0 = f"{MFMA} {vr(O,16)}, {vr(V+8*t,4)}, {vr(P,4)}, {'0' if (t == 0 and it < 2) else vr(O,16)}"
        pv1 = f"{MFMA} {vr(O,16)}, {vr(V+8*t-4,4)}, {vr(P+4,4)}, {vr(O,16)}"
        qk = f"{MFMA} {vr(sn,16)}, {vr(K+4*(t+1),4)}, {vr(Q[it&1],4)}, 0"
        seq = [[x] for x in [E(0), C1p, E(1), E(2), pv1, C0[0], E(3), E(4), C0[1], E(5), E(6), qk, C0[2], E(7), E(8), C0[3], E(9), E(10), E(11), pv0, C1[0], E(12), C1[1], E(13), E(14), C1[2], E(15)]]
        if it == 0:
            if t < 7: seq[11].insert(0, f"s_waitcnt vmcnt({25-(2+3*t)})")
            seq[19].insert(0, f"s_waitcnt vmcnt({25-(4+3*t) if t < 7 else 1})")
        if t == 0: seq[1] = []; seq[4] = []
        if t == 7: seq[11] = []
        if PRIO and t == int(os.environ.get("PA", 1)): seq[0].append("s_setprio 2")
        for x in seq:
            for y in x: A(y)
    for it in range(8):
        for t in range(8): tile(t, it)
        if PRIO: A("s_setprio 3")
        else: A("s_nop 0")
        A(f"v_cvt_pk_bf16_f32 v{P+7}, v{S[1]+14}, v{S[1]+15}")
        if it == 7: break
        A("s_waitcnt vmcnt(0)")
        A(f"{MFMA} {vr(S[0],16)}, {vr(K,4)}, {vr(Q[(it+1)&1],4)}, 0")
        A(f"{MFMA} {vr(O,16)}, {vr(V+60,4)}, {vr(P+4,4)}, {vr(O,16)}")
        if it < 6: qload(it + 2); A("s_nop 5")
        else: A("s_nop 7\ns_nop 3")
        ad = AD[it >> 1]; e = it & 1
        A(f"v_mov_b32 v{O+9}, {(it>>1)+1}")
        A(f"ds_write_b128 v{ad}, {vr(O,4)} offset:{1024+2048*e}\nds_write_b128 v{ad}, {vr(O+4,4)} offset:{2048+2048*e}\nds_write_b64 v{ad}, {vr(O+8,2)} offset:{8*e}")
        n = it + 1
        if n >= 2:
            for x in rd(O, AD[n >> 1], n & 1): A(x)
            chk(O, AD[n >> 1], n & 1, n >> 1)
        else: A("s_waitcnt lgkmcnt(0)")
        if PRIO: A("s_setprio 0")
    stamp(A, 3)
    A(f"s_mov_b32 s20, {4*AT_BLK}\ns_sub_u32 s21, 0, s20\ns_cmp_eq_u32 s39, 0\ns_cselect_b32 s20, s20, s21")
    A(f"{MFMA} {vr(O,16)}, {vr(V+60,4)}, {vr(P+4,4)}, {vr(O,16)}")
    A(f"v_add_u32 v{AD[3]}, s20, v{AD[3]}")
    OB = S[0]
    for x in rd(OB, AD[3], 0): A(x)
    A(f"s_mov_b32 s20, {hex(f32(2.0**-60))}\ns_mov_b32 s21, {hex(f32(2.0**120))}")
    A(f"s_lshl_b32 s34, s35, 5\ns_add_u32 s34, s34, s12\ns_lshl_b32 s34, s34, 10\ns_add_u32 s34, s34, {WS_O}")
    chk(OB, AD[3], 0, 4)
    for r in range(9): A(f"v_add_f32 v{O+r}, v{O+r}, v{OB+r}")
    fin = A.label("at_fin"); fb = A.label("at_fb")
    A(f"v_mul_f32 v7, 0, v{O}")
    for r in range(1, 8): A(f"v_fma_f32 v7, v{O+r}, 0, v7")
    A(f"v_add_f32 v7, v7, v{O+8}")
    A("v_cmp_le_f32 vcc, s20, v7\nv_cmp_ge_f32 s[28:29], s21, v7\ns_and_b64 vcc, vcc, s[28:29]\ns_andn2_b64 s[28:29], exec, vcc")
    if os.environ.get("FB") != "never": A(f"s_cbranch_scc1 {fb}")
    A(f"{fin}:")
    A(f"v_rcp_f32 v7, v{O+8}\ns_nop 0")
    if GSCALE: A("v_mul_f32 v7, v7, v6")
    for r in range(8): A(f"v_mul_f32 v{O+r}, v{O+r}, v7")
    for i in range(4): A(f"v_cvt_pk_bf16_f32 v{P+i}, v{O+2*i}, v{O+2*i+1}")
    A(f"buffer_store_dwordx4 {vr(P,4)}, v2, s[24:27], s34 offen{sc}")
    def tail():
        for (r, b, D, ad, e, tag) in retries:
            l = A.label("at_rl")
            A(f"{r}:\ns_mov_b32 s37, 0x100000\n{l}:\ns_sleep {os.environ.get('SLP', 2)}")
            for x in rd(D, ad, e): A(x)
            A(f"s_sub_u32 s37, s37, 1\ns_waitcnt lgkmcnt(0)\ns_cbranch_scc1 {b}")
            A(f"v_cmp_ne_u32 vcc, {tag}, v{D+9}\ns_cbranch_vccnz {l}\ns_branch {b}")
        C = S[1]; KF = K; VF = V; M = K + 4; QF = Q[1]
        A(f"{fb}:")
        A(f"s_add_u32 s16, s33, {WS_K}\ns_mov_b32 s23, 64\nv_mov_b32 v{M}, 0xff800000")
        l1 = A.label("at_fb1")
        A(f"{l1}:")
        A(f"buffer_load_dwordx4 {vr(KF,4)}, v2, s[24:27], s16 offen{sc}\ns_waitcnt vmcnt(0)")
        A(f"{MFMA} {vr(S[0],16)}, {vr(KF,4)}, {vr(QF,4)}, 0\ns_nop 7\ns_nop 3")
        for i in range(8): A(f"v_max3_f32 v{M}, v{S[0]+2*i}, v{S[0]+2*i+1}, v{M}")
        A(f"s_add_u32 s16, s16, 1024\ns_sub_u32 s23, s23, 1\ns_cmp_lg_u32 s23, 0\ns_cbranch_scc1 {l1}")
        A(f"v_mov_b32 v{M+1}, v{M}\ns_nop 1\nv_permlane32_swap_b32 v{M}, v{M+1}\ns_nop 1\nv_max_f32 v{M}, v{M}, v{M+1}")
        for r in range(16): A(f"v_sub_f32 v{C+r}, 0, v{M}")
        for r in range(16): A(f"v_mov_b32 v{O+r}, 0")
        A(f"s_add_u32 s16, s33, {WS_K}\ns_add_u32 s17, s33, {WS_V}\ns_mov_b32 s23, 64")
        l2 = A.label("at_fb2")
        A(f"{l2}:")
        A(f"buffer_load_dwordx4 {vr(KF,4)}, v2, s[24:27], s16 offen{sc}")
        A("s_mov_b32 exec_lo, 0xffff\ns_mov_b32 exec_hi, 0xffff")
        A(f"buffer_load_dwordx4 {vr(VF,4)}, v3, s[24:27], s17 offen{sc}")
        A(f"buffer_load_dwordx4 {vr(VF+4,4)}, v3, s[24:27], s17 offen offset:512{sc}")
        A("s_mov_b64 exec, -1\ns_waitcnt vmcnt(0)")
        s = S[0]
        A(f"{MFMA} {vr(s,16)}, {vr(KF,4)}, {vr(QF,4)}, {vr(C,16)}\ns_nop 7\ns_nop 3")
        for r in range(16): A(f"v_exp_f32 v{s+r}, v{s+r}")
        A("s_nop 0")
        for i in range(8): A(f"v_cvt_pk_bf16_f32 v{P+i}, v{s+2*i}, v{s+2*i+1}")
        A("s_nop 1")
        A(f"{MFMA} {vr(O,16)}, {vr(VF,4)}, {vr(P,4)}, {vr(O,16)}")
        A(f"{MFMA} {vr(O,16)}, {vr(VF+4,4)}, {vr(P+4,4)}, {vr(O,16)}")
        A("s_nop 7\ns_nop 7")
        A(f"s_add_u32 s16, s16, 1024\ns_add_u32 s17, s17, 1024\ns_sub_u32 s23, s23, 1\ns_cmp_lg_u32 s23, 0\ns_cbranch_scc1 {l2}")
        A(f"s_branch {fin}")
    return tail

def gen_attn(A, name):
    khead(A, name)
    ex = A.label("at_exit")
    A(f"s_cmp_ge_u32 s2, 256\ns_cbranch_scc1 {ex}"); prof_init(A)
    A("s_load_dwordx2 s[10:11], s[0:1], 80\nv_readfirstlane_b32 s3, v0\nv_and_b32 v1, 63, v0\ns_lshr_b32 s3, s3, 6\ns_waitcnt lgkmcnt(0)")
    stamp(A, 5)
    srd(A, 24, 10, WS_SIZE)
    tail = gen_attn_role(A)
    stamp(A, 6); prof_end(A)
    A(f"{ex}:\ns_endpgm")
    tail()
    return 256

FA_X = 0; FA_W = 65536; FA_SLOT = 6400; FA_UP = 3072 + 128; FA_NS = 3; FA_WAVE = FA_SLOT * FA_NS
FA_LDS = FA_W + 4 * FA_WAVE
def wgmap_ffn(A):
    A("""s_and_b32 s30, s2, 7
    s_lshr_b32 s31, s2, 3
    s_lshl_b32 s12, s30, 2
    s_and_b32 s32, s31, 3
    s_add_u32 s12, s12, s32
    s_lshr_b32 s13, s31, 2""")

def gen_ffa_role(A, wv, done, base=0):
    ACC = 64; XF = 16; WF = 32
    A(f"s_lshl_b32 s40, s12, 16\ns_lshl_b32 s41, {wv}, 14\ns_add_u32 s40, s40, s41\ns_add_u32 s41, s41, {base+FA_X}")
    A("v_lshlrev_b32 v2, 4, v1")
    for i in range(16):
        A(f"v_xor_b32 v{16+i}, {16*i}, v2")
    for i in range(16):
        A(f"s_add_u32 m0, s41, {i*1024}\ns_add_u32 s42, s40, {i*1024}")
        A(f"buffer_load_dwordx4 v{16+i}, s[16:19], s42 offen lds")
    A(f"s_lshl_b32 s14, s13, 2\ns_add_u32 s14, s14, {wv}\ns_mul_i32 s15, s14, 96")
    A("s_mov_b32 s45, 43691")
    for j in range(3):
        A(f"""v_add_u32 v8, {64*j}, v1
        v_mul_lo_u32 v9, v8, s45
        v_lshrrev_b32 v9, 18, v9
        v_mul_u32_u24 v10, 6, v9
        v_sub_u32 v10, v8, v10
        v_mul_u32_u24 v9, 2752, v9
        v_lshl_add_u32 v{3+j}, v10, 4, v9""")
    A(f"s_mul_i32 s43, {wv}, {FA_WAVE}\ns_add_u32 s43, s43, {base+FA_W}")
    def wload():
        for j in range(3):
            A(f"s_add_u32 m0, s46, {j*1024}\ns_nop 0\nbuffer_load_dwordx4 v{3+j}, s[20:23], s44 offen lds")
        for j in range(3):
            A(f"s_add_u32 m0, s46, {FA_UP+j*1024}\ns_nop 0\nbuffer_load_dwordx4 v{3+j}, s[36:39], s44 offen lds")
        A(f"s_add_u32 s44, s44, {32*2752}\ns_add_u32 s46, s46, {FA_SLOT}\ns_cmp_eq_u32 s46, s47\ns_cselect_b32 s46, s43, s46")
    A(f"s_mov_b32 s44, s15\ns_mov_b32 s46, s43\ns_add_u32 s47, s43, {FA_WAVE}")
    for c in range(FA_NS): wload()
    stamp(A, 4)
    A(f"""v_lshrrev_b32 v8, 5, v1
    v_and_b32 v9, 15, v1
    v_lshrrev_b32 v10, 2, v9
    v_lshl_add_u32 v10, v8, 3, v10
    v_mul_u32_u24 v10, 96, v10
    v_and_b32 v11, 3, v1
    v_lshl_add_u32 v10, v11, 3, v10
    v_bfe_u32 v11, v1, 4, 1
    v_mul_u32_u24 v11, {FA_UP}, v11
    v_add_u32 v6, v10, v11
    v_xor_b32 v9, v9, v8
    v_lshlrev_b32 v9, 4, v9
    v_and_b32 v10, 31, v1
    v_lshl_add_u32 v7, v10, 10, v9""")
    if base + FA_X: A(f"v_add_u32 v7, {base+FA_X}, v7")
    for r in range(96): A(f"v_mov_b32 v{ACC+r}, 0")
    A(f"s_waitcnt vmcnt({6*FA_NS})\ns_barrier"); stamp(A, 1)
    A(f"s_cmp_ge_u32 s14, 29\ns_cbranch_scc1 {done}")
    A("s_mov_b32 s48, s43\ns_mov_b32 s49, 0")
    lp = A.label("fa_loop")
    A(f"{lp}:")
    A("v_add_u32 v8, s48, v6\nv_xor_b32 v9, s49, v7\nv_xor_b32 v10, 32, v9")
    A(f"s_waitcnt vmcnt({6*(FA_NS-1)})")
    for ks in range(2):
        for tt in range(2):
            A(f"ds_read_b128 {vr(XF+8*ks+4*tt,4)}, v{9+ks} offset:{32768*tt}")
        for t in range(3):
            for p in range(2):
                A(f"ds_read_b64_tr_b16 {vr(WF+12*ks+4*t+2*p,2)}, v8 offset:{(16*ks+4*p)*96+32*t}")
        if ks == 0: A("s_waitcnt lgkmcnt(7)")
    A(f"s_add_u32 s48, s48, {FA_SLOT}\ns_cmp_eq_u32 s48, s47\ns_cselect_b32 s48, s43, s48\ns_add_u32 s49, s49, 64")
    A("s_waitcnt lgkmcnt(8)")
    for t in range(3):
        for tt in range(2):
            a = vr(ACC + 48*tt + 16*t, 16)
            A(f"{MFMA} {a}, {vr(WF+4*t,4)}, {vr(XF+4*tt,4)}, {a}")
    A("s_waitcnt lgkmcnt(0)")
    wload()
    for t in range(3):
        for tt in range(2):
            a = vr(ACC + 48*tt + 16*t, 16)
            A(f"{MFMA} {a}, {vr(WF+12+4*t,4)}, {vr(XF+8+4*tt,4)}, {a}")
    A(f"s_cmp_lt_u32 s49, 1024\ns_cbranch_scc1 {lp}"); stamp(A, 2)
    c0 = 2 * 0.7978845608028654 * LOG2E
    A(f"s_mov_b32 s50, {hex(f32(-c0))}\ns_mov_b32 s51, {hex(f32(-c0*0.044715))}")
    A(f"s_lshl_b32 s40, s12, 1\ns_mul_i32 s40, s40, 86\ns_mul_i32 s41, s14, 3\ns_add_u32 s40, s40, s41\ns_lshl_b32 s40, s40, 10\ns_add_u32 s40, s40, {WS_H}")
    A("v_mov_b32 v15, s50\ns_nop 4")
    for t in range(3):
        if t == 2: A(f"s_cmp_eq_u32 s14, 28\ns_cbranch_scc1 {done}")
        for tt in range(2):
            a = ACC + 48*tt + 16*t; T = 16
            for r in range(8): A(f"v_mul_f32 v{T+r}, v{a+r}, v{a+r}")
            for r in range(8): A(f"v_fma_f32 v{T+r}, v{T+r}, s51, v15")
            for r in range(8): A(f"v_mul_f32 v{T+r}, v{T+r}, v{a+r}")
            for r in range(8): A(f"v_exp_f32 v{T+r}, v{T+r}")
            for r in range(8): A(f"v_mul_f32 v{a+r}, v{a+r}, v{a+8+r}")
            for r in range(8): A(f"v_add_f32 v{T+r}, 1.0, v{T+r}")
            for r in range(8): A(f"v_rcp_f32 v{T+r}, v{T+r}")
            A("s_nop 0")
            for r in range(8): A(f"v_mul_f32 v{a+r}, v{a+r}, v{T+r}")
            for i in range(4): A(f"v_cvt_pk_bf16_f32 v{a+8+i}, v{a+2*i}, v{a+2*i+1}")
            A(f"s_add_u32 s41, s40, {(tt*86+t)*1024}")
            A(f"buffer_store_dwordx4 {vr(a+8,4)}, v2, s[24:27], s41 offen")

def gen_ffa(A, name):
    khead(A, name)
    ex = A.label("fa_exit")
    A(f"s_cmp_ge_u32 s2, 256\ns_cbranch_scc1 {ex}"); prof_init(A)
    A("s_load_dwordx2 s[4:5], s[0:1], 0\ns_load_dwordx4 s[8:11], s[0:1], 32\ns_load_dwordx2 s[6:7], s[0:1], 80")
    A("v_readfirstlane_b32 s3, v0\nv_and_b32 v1, 63, v0\ns_lshr_b32 s3, s3, 6")
    wgmap_ffn(A)
    A("s_waitcnt lgkmcnt(0)")
    stamp(A, 5)
    srd(A, 16, 4, 2048*1024); srd(A, 20, 8, 512*2752); srd(A, 36, 10, 512*2752); srd(A, 24, 6, WS_SIZE)
    dn = A.label("fa_done")
    gen_ffa_role(A, "s3", dn)
    A(f"{dn}:"); stamp(A, 6); A("s_waitcnt vmcnt(0)"); prof_end(A)
    A(f"{ex}:\ns_endpgm")
    return 160

FB_NS = 4; FB_WAVE = 4096 * FB_NS; FB_LDS = 4 * FB_WAVE
def gen_down_role(A, wv, kind, base=0):
    nks = 86 if kind == "B" else 32
    nch = nks // 2; act = WS_H if kind == "B" else WS_O
    per = (nch + 3) // 4
    ACC = 96; HF = 32; WF = 16
    A("v_lshlrev_b32 v2, 4, v1")
    A("""v_lshrrev_b32 v8, 3, v1
    v_bfe_u32 v9, v1, 4, 1
    v_lshlrev_b32 v9, 1, v9
    v_and_b32 v10, 7, v1
    v_xor_b32 v9, v9, v10
    v_lshlrev_b32 v9, 4, v9
    v_lshl_add_u32 v3, v8, 10, v9""")
    A(f"""s_lshr_b32 s44, {wv}, 1
    s_lshl_b32 s45, s12, 1
    s_add_u32 s40, s45, s44
    s_xor_b32 s41, s40, 1
    s_mul_i32 s40, s40, {nks*1024}
    s_mul_i32 s41, s41, {nks*1024}
    s_lshl_b32 s45, {wv}, 11
    s_add_u32 s45, s45, {act}
    s_add_u32 s40, s40, s45
    s_add_u32 s41, s41, s45
    s_lshl_b32 s42, {wv}, 15
    s_lshl_b32 s45, s13, 7
    s_add_u32 s42, s42, s45
    s_mul_i32 s43, {wv}, {FB_WAVE}""")
    if base: A(f"s_add_u32 s43, s43, {base}")
    def load(i):
        sl = i % FB_NS
        for j in range(4):
            A(f"s_add_u32 m0, s43, {sl*4096 + j*1024}\ns_add_u32 s45, s42, {i*131072 + j*8192}")
            A("buffer_load_dwordx4 v3, s[20:23], s45 offen lds")
        for tt in range(2):
            A(f"s_add_u32 s45, s{40+tt}, {i*8192}")
            for ks in range(2):
                A(f"buffer_load_dwordx4 {vr(HF+16*sl+8*ks+4*tt,4)}, v2, s[24:27], s45 offen offset:{ks*1024}")
    short = (nch % 4 != 0)
    lastlab = A.label("dn_red")
    npre = min(FB_NS, per)
    for i in range(npre): load(i)
    stamp(A, 2)
    A(f"""v_lshrrev_b32 v8, 5, v1
    v_bfe_u32 v9, v1, 2, 2
    v_lshl_add_u32 v8, v8, 2, v9
    v_lshlrev_b32 v8, 7, v8
    v_and_b32 v10, 1, v1
    v_lshl_add_u32 v8, v10, 6, v8
    v_bfe_u32 v10, v1, 4, 1
    v_lshl_add_u32 v8, v10, 4, v8
    v_bfe_u32 v10, v1, 1, 1
    v_lshl_add_u32 v8, v10, 3, v8
    v_bfe_u32 v10, v1, 3, 1
    s_and_b32 s45, {wv}, 1
    v_xor_b32 v10, s45, v10
    v_lshl_add_u32 v8, v10, 5, v8
    v_add_u32 v4, s43, v8
    v_xor_b32 v5, 32, v4""")
    for i in range(per):
        sl = i % FB_NS
        issued = min(per, i + FB_NS) if i else npre
        issued = min(per, npre + max(0, i - 0)) if False else issued
        if i == per - 1 and short:
            A(f"s_cmp_ge_u32 {wv}, {nch % 4}\ns_cbranch_scc1 {lastlab}")
        A(f"s_waitcnt vmcnt({8*(ISS(i,per,npre,short) )})")
        if i in (0,): stamp(A, 1 if i == 0 else 2)
        for ks in range(2):
            for j in range(2):
                for p in range(2):
                    A(f"ds_read_b64_tr_b16 {vr(WF+8*ks+4*j+2*p,2)}, v{4+j} offset:{sl*4096 + (16*ks+8*p)*128}")
        A("s_waitcnt lgkmcnt(4)")
        for ks in range(2):
            if ks == 1: A("s_waitcnt lgkmcnt(0)")
            for tt in range(2):
                for j in range(2):
                    a = vr(ACC + 32*tt + 16*j, 16)
                    A(f"{MFMA} {a}, {vr(WF+8*ks+4*j,4)}, {vr(HF+16*sl+8*ks+4*tt,4)}, {'0' if (i==0 and ks==0) else a}")
        if i + FB_NS < per: load(i + FB_NS)
    A(f"{lastlab}:")
    A("s_waitcnt vmcnt(0)"); stamp(A, 3)
    A(f"s_lshl_b32 s45, s12, 1\ns_add_u32 s45, s45, s44\ns_lshl_b32 s46, s45, 7\ns_add_u32 s46, s46, {WS_G}")
    A("v_and_b32 v8, 31, v1\nv_lshlrev_b32 v9, 2, v8\nbuffer_load_dword v6, v9, s[24:27], s46 offen")
    A(f"s_lshl_b32 s47, s12, 3\ns_add_u32 s47, s47, s13\ns_lshl_b32 s47, s47, 2\ns_add_u32 s47, s47, {wv}\ns_lshl_b32 s47, s47, 11\ns_add_u32 s47, s47, {WS_P}")
    if kind == "O":
        A("buffer_load_dwordx4 v[16:19], v2, s[24:27], s47 offen\nbuffer_load_dwordx4 v[20:23], v2, s[24:27], s47 offen offset:1024")
    A("s_barrier")
    for q in range(1, 4):
        A(f"s_xor_b32 s46, {wv}, {q}\ns_mul_i32 s46, s46, {FB_WAVE}\nv_add_u32 v10, s46, v2")
        for k in range(4):
            A(f"ds_write_b128 v10, {vr(ACC+16*q+4*k,4)} offset:{base + (q-1)*4096 + k*1024}")
    A("v_add_u32 v10, s43, v2\ns_waitcnt lgkmcnt(0)\ns_barrier"); stamp(A, 4)
    for q in range(1, 4):
        for k in range(4):
            A(f"ds_read_b128 {vr(ACC+16*q+4*k,4)}, v10 offset:{(q-1)*4096 + k*1024}")
    for q in range(1, 4):
        A(f"s_waitcnt lgkmcnt({12-4*q})")
        for r in range(16): A(f"v_add_f32 v{ACC+r}, v{ACC+r}, v{ACC+16*q+r}")
    A("s_waitcnt vmcnt(0)")
    if kind == "B":
        A("v_sub_f32 v6, 1.0, v6")
        for r in range(16): A(f"v_mul_f32 v{ACC+r}, v{ACC+r}, v6")
        for i in range(8): A(f"v_cvt_pk_bf16_f32 v{16+i}, v{ACC+2*i}, v{ACC+2*i+1}")
        A("buffer_store_dwordx4 v[16:19], v2, s[24:27], s47 offen\nbuffer_store_dwordx4 v[20:23], v2, s[24:27], s47 offen offset:1024")
    else:
        for i in range(8):
            A(f"v_lshlrev_b32 v24, 16, v{16+i}\nv_and_b32 v25, 0xffff0000, v{16+i}")
            A(f"v_fma_f32 v{ACC+2*i}, v{ACC+2*i}, v6, v24\nv_fma_f32 v{ACC+2*i+1}, v{ACC+2*i+1}, v6, v25")
        for i in range(8): A(f"v_cvt_pk_bf16_f32 v{16+i}, v{ACC+2*i}, v{ACC+2*i+1}")
        A(f"""v_lshrrev_b32 v9, 5, v1
        v_lshlrev_b32 v9, 6, v9
        v_lshl_add_u32 v9, v8, 10, v9
        s_lshl_b32 s45, s45, 15
        s_lshl_b32 s46, s13, 7
        s_add_u32 s45, s45, s46
        s_and_b32 s46, {wv}, 1
        s_lshl_b32 s46, s46, 5
        s_add_u32 s45, s45, s46""")
        A("buffer_store_dwordx4 v[16:19], v9, s[16:19], s45 offen\nbuffer_store_dwordx4 v[20:23], v9, s[16:19], s45 offen offset:16")

def ISS(i, per, npre, short):
    issued = min(per, npre + i)
    return issued - (i + 1)

def gen_down(A, name, kind):
    khead(A, name)
    ex = A.label("dn_exit")
    A(f"s_cmp_ge_u32 s2, 256\ns_cbranch_scc1 {ex}"); prof_init(A)
    A(f"s_load_dwordx2 s[4:5], s[0:1], {48 if kind=='B' else 16}\ns_load_dwordx2 s[6:7], s[0:1], 80\ns_load_dwordx2 s[8:9], s[0:1], 64")
    A("v_readfirstlane_b32 s3, v0\nv_and_b32 v1, 63, v0\ns_lshr_b32 s3, s3, 6")
    wgmap_ffn(A)
    A("s_waitcnt lgkmcnt(0)")
    stamp(A, 5)
    srd(A, 20, 4, (1376 if kind == "B" else 512) * 1024); srd(A, 24, 6, WS_SIZE); srd(A, 16, 8, 2048*1024)
    gen_down_role(A, "s3", kind); stamp(A, 6); prof_end(A)
    A(f"{ex}:\ns_endpgm")
    return 160

def header():
    ref = open("cdna_kernels/" + NAME + ".s.ref").read().split("\n")
    return [l for l in ref if l.startswith(";") and "@launch" not in l and "Override" not in l and "grid=ceil" not in l]

def build(launches):
    A = Asm()
    for l in header(): A(l)
    for (n, g, blk, lds, fn) in launches:
        A(f"; @launch kernel={n} grid=({g},1,1) block=({blk},1,1) lds={lds}")
    A('.amdgcn_target "amdgcn-amd-amdhsa--gfx950"\n.text')
    descs = []
    for (n, g, blk, lds, fn) in launches:
        st = len(A.L)
        v = fn(A, n); KIDX[0] += 1
        errs = check_hazards(A.L[st:])
        for e in errs: print("HAZARD", n, e, file=sys.stderr)
        descs.append((n, v))
    A('.section .rodata,"a"')
    for n, v in descs: kdesc(A, n, v)
    return A.text()

if __name__ == "__main__":
    L = [("k1_kernel", 256, 512, K1_LDS, gen_k1),
         ("ffa_kernel", 256, 256, FA_LDS, gen_ffa),
         ("attn_kernel", 256, 512, AT_LDS, gen_attn),
         ("ffb_kernel", 256, 256, FB_LDS, lambda A, n: gen_down(A, n, "B")),
         ("out_kernel", 256, 256, FB_LDS, lambda A, n: gen_down(A, n, "O"))]
    def gen_empty(A, n):
        khead(A, n); A("s_endpgm"); return 8
    pre = int(os.environ.get("PRE", 0)); post = int(os.environ.get("POST", 0))
    L = [(f"e{i}_kernel", 256, 256, 0, gen_empty) for i in range(pre)] + L + [(f"f{i}_kernel", 256, 256, 0, gen_empty) for i in range(post)]
    out = sys.argv[1] if len(sys.argv) > 1 else "cdna_kernels/" + NAME + ".s"
    open(out, "w").write(build(L))
```

```python
from common import *

AT_BLK = 5120
AT_LDS = 8 * AT_BLK
AK = 8; AV = 40; AS = [104, 120]; AP = 136; AO = 144; AQ = [160, 164]
GSCALE = 1
PRIO = int(os.environ.get("PRIO", 1))
def attn_map(A):
    A("""s_and_b32 s30, s2, 7
    s_lshr_b32 s31, s2, 3
    s_lshl_b32 s12, s30, 2
    s_lshr_b32 s32, s31, 3
    s_add_u32 s12, s12, s32
    s_and_b32 s13, s31, 7""")

def gen_attn_role(A, wv="s3", base=0, sc=""):
    K, V, S, P, O, Q = AK, AV, AS, AP, AO, AQ
    AD = [4, 5, 0, 7]
    attn_map(A)
    A(f"v_lshlrev_b32 v2, 4, v1\ns_and_b32 s38, {wv}, 3\ns_lshr_b32 s39, {wv}, 2")
    A(f"s_mul_i32 s22, s39, {4*AT_BLK}\ns_add_u32 s22, s22, {base}")
    A(f"v_mov_b64 {vr(O,2)}, 0\nv_mov_b64 {vr(O+2,2)}, 0")
    for j in range(4):
        A(f"s_add_u32 s23, s38, {j}\ns_and_b32 s23, s23, 3\ns_mul_i32 s23, s23, {AT_BLK}\ns_add_u32 s23, s23, s22\nv_add_u32 v{AD[j]}, s23, v2")
    A(f"ds_write_b128 v{AD[0]}, {vr(O,4)}")
    A(f"""s_lshl_b32 s33, s12, 16
    s_lshl_b32 s14, s13, 13
    s_add_u32 s14, s14, s33
    s_lshl_b32 s15, s38, 1
    s_lshl_b32 s16, {wv}, 13
    s_add_u32 s16, s16, s33
    s_add_u32 s17, s16, {WS_V}
    s_add_u32 s16, s16, {WS_K}
    s_add_u32 s18, s16, 4096
    s_add_u32 s19, s17, 4096""")
    def kload(t): A(f"buffer_load_dwordx4 {vr(K+4*t,4)}, v2, s[24:27], {'s16' if t<4 else 's18'} offen offset:{(t&3)*1024}{sc}")
    def vload(t, m): A(f"buffer_load_dwordx4 {vr(V+8*t+4*m,4)}, v3, s[24:27], {'s17' if t<4 else 's19'} offen offset:{(t&3)*1024+m*512}{sc}")
    def qload(it):
        A(f"s_add_u32 s34, s15, {it}\ns_and_b32 s34, s34, 7\ns_xor_b32 s34, s34, s39\ns_lshl_b32 s34, s34, 10\ns_add_u32 s34, s34, s14")
        A(f"buffer_load_dwordx4 {vr(Q[it&1],4)}, v2, s[24:27], s34 offen{sc}")
    A("s_add_u32 s35, s15, 7\ns_and_b32 s35, s35, 7\ns_xor_b32 s35, s35, s39\ns_lshl_b32 s36, s13, 3\ns_add_u32 s35, s35, s36")
    A(f"""v_lshrrev_b32 v{P}, 5, v1
    v_and_b32 v{P+1}, 15, v1
    v_lshl_add_u32 v3, v{P}, 4, v{P+1}
    v_lshlrev_b32 v3, 4, v3
    v_and_b32 v{P}, 27, v1
    v_cmp_eq_u32 vcc, 16, v{P}
    s_mov_b32 s20, 0xffff
    s_mov_b32 s21, 0xffff
    v_mov_b32 v{P}, 0x3f803f80
    v_cndmask_b32 v{P}, 0, v{P}, vcc
    v_mov_b32 v{P+1}, v{P}""")
    nb = A.label("at_nb"); nb2 = A.label("at_nb2")
    if PRIO: A("s_setprio 3")
    A(f"s_waitcnt lgkmcnt(0)\ns_cmp_eq_u32 s39, 0\ns_cbranch_scc1 {nb}\ns_barrier\n{nb}:")
    if GSCALE:
        A(f"s_lshl_b32 s36, s35, 7\ns_lshr_b32 s37, s12, 2\ns_lshl_b32 s37, s37, 13\ns_add_u32 s36, s36, s37\ns_add_u32 s36, s36, {WS_G}\nv_and_b32 v6, 31, v1\nv_lshlrev_b32 v6, 2, v6")
        A(f"buffer_load_dword v6, v6, s[24:27], s36 offen{sc}")
    qload(0); kload(0); kload(1)
    for t in range(8):
        for r in range(0, 8, 2): A(f"v_mov_b64 {vr(V+8*t+r,2)}, {vr(P,2)}")
        A("s_mov_b64 exec, s[20:21]")
        vload(t, 0); vload(t, 1)
        A("s_mov_b64 exec, -1")
        if t < 6: kload(t + 2)
    qload(1)
    A(f"s_cmp_eq_u32 s39, 1\ns_cbranch_scc1 {nb2}\ns_barrier\n{nb2}:")
    if PRIO: A("s_setprio 0")
    A("s_waitcnt vmcnt(24)"); stamp(A, 1)
    A(f"{MFMA} {vr(S[0],16)}, {vr(K,4)}, {vr(Q[0],4)}, 0")
    A("s_nop 7\ns_nop 3")
    retries = []
    def rd(D, ad, e):
        return [f"ds_read_b64 {vr(D+8,2)}, v{ad} offset:{8*e}", f"ds_read_b128 {vr(D,4)}, v{ad} offset:{1024+2048*e}", f"ds_read_b128 {vr(D+4,4)}, v{ad} offset:{2048+2048*e}"]
    def chk(D, ad, e, tag):
        r = A.label("at_retry"); b = A.label("at_back")
        retries.append((r, b, D, ad, e, tag))
        A(f"s_waitcnt lgkmcnt(0)\nv_cmp_ne_u32 vcc, {tag}, v{D+9}\ns_cbranch_vccnz {r}\n{b}:")
    def tile(t, it):
        s = S[t & 1]; sn = S[(t + 1) & 1]
        E = lambda r: f"v_exp_f32 v{s+r}, v{s+r}"
        C0 = [f"v_cvt_pk_bf16_f32 v{P+i}, v{s+2*i}, v{s+2*i+1}" for i in range(4)]
        C1 = [f"v_cvt_pk_bf16_f32 v{P+4+i}, v{s+8+2*i}, v{s+8+2*i+1}" for i in range(4)]
        C1p = f"v_cvt_pk_bf16_f32 v{P+7}, v{sn+14}, v{sn+15}"
        pv0 = f"{MFMA} {vr(O,16)}, {vr(V+8*t,4)}, {vr(P,4)}, {'0' if (t == 0 and it < 2) else vr(O,16)}"
        pv1 = f"{MFMA} {vr(O,16)}, {vr(V+8*t-4,4)}, {vr(P+4,4)}, {vr(O,16)}"
        qk = f"{MFMA} {vr(sn,16)}, {vr(K+4*(t+1),4)}, {vr(Q[it&1],4)}, 0"
        seq = [[x] for x in [E(0), C1p, E(1), E(2), pv1, C0[0], E(3), E(4), C0[1], E(5), E(6), qk, C0[2], E(7), E(8), C0[3], E(9), E(10), E(11), pv0, C1[0], E(12), C1[1], E(13), E(14), C1[2], E(15)]]
        if it == 0:
            if t < 7: seq[11].insert(0, f"s_waitcnt vmcnt({25-(2+3*t)})")
            seq[19].insert(0, f"s_waitcnt vmcnt({25-(4+3*t) if t < 7 else 1})")
        if t == 0: seq[1] = []; seq[4] = []
        if t == 7: seq[11] = []
        if PRIO and t == int(os.environ.get("PA", 1)): seq[0].append("s_setprio 2")
        for x in seq:
            for y in x: A(y)
    for it in range(8):
        for t in range(8): tile(t, it)
        if PRIO: A("s_setprio 3")
        else: A("s_nop 0")
        A(f"v_cvt_pk_bf16_f32 v{P+7}, v{S[1]+14}, v{S[1]+15}")
        if it == 7: break
        A("s_waitcnt vmcnt(0)")
        A(f"{MFMA} {vr(S[0],16)}, {vr(K,4)}, {vr(Q[(it+1)&1],4)}, 0")
        A(f"{MFMA} {vr(O,16)}, {vr(V+60,4)}, {vr(P+4,4)}, {vr(O,16)}")
        if it < 6: qload(it + 2); A("s_nop 5")
        else: A("s_nop 7\ns_nop 3")
        ad = AD[it >> 1]; e = it & 1
        A(f"v_mov_b32 v{O+9}, {(it>>1)+1}")
        A(f"ds_write_b128 v{ad}, {vr(O,4)} offset:{1024+2048*e}\nds_write_b128 v{ad}, {vr(O+4,4)} offset:{2048+2048*e}\nds_write_b64 v{ad}, {vr(O+8,2)} offset:{8*e}")
        n = it + 1
        if n >= 2:
            for x in rd(O, AD[n >> 1], n & 1): A(x)
            chk(O, AD[n >> 1], n & 1, n >> 1)
        else: A("s_waitcnt lgkmcnt(0)")
        if PRIO: A("s_setprio 0")
    stamp(A, 3)
    A(f"s_mov_b32 s20, {4*AT_BLK}\ns_sub_u32 s21, 0, s20\ns_cmp_eq_u32 s39, 0\ns_cselect_b32 s20, s20, s21")
    A(f"{MFMA} {vr(O,16)}, {vr(V+60,4)}, {vr(P+4,4)}, {vr(O,16)}")
    A(f"v_add_u32 v{AD[3]}, s20, v{AD[3]}")
    OB = S[0]
    for x in rd(OB, AD[3], 0): A(x)
    A(f"s_mov_b32 s20, {hex(f32(2.0**-60))}\ns_mov_b32 s21, {hex(f32(2.0**120))}")
    A(f"s_lshl_b32 s34, s35, 5\ns_add_u32 s34, s34, s12\ns_lshl_b32 s34, s34, 10\ns_add_u32 s34, s34, {WS_O}")
    chk(OB, AD[3], 0, 4)
    for r in range(9): A(f"v_add_f32 v{O+r}, v{O+r}, v{OB+r}")
    fin = A.label("at_fin"); fb = A.label("at_fb")
    A(f"v_mul_f32 v7, 0, v{O}")
    for r in range(1, 8): A(f"v_fma_f32 v7, v{O+r}, 0, v7")
    A(f"v_add_f32 v7, v7, v{O+8}")
    A("v_cmp_le_f32 vcc, s20, v7\nv_cmp_ge_f32 s[28:29], s21, v7\ns_and_b64 vcc, vcc, s[28:29]\ns_andn2_b64 s[28:29], exec, vcc")
    if os.environ.get("FB") != "never": A(f"s_cbranch_scc1 {fb}")
    A(f"{fin}:")
    A(f"v_rcp_f32 v7, v{O+8}\ns_nop 0")
    if GSCALE: A("v_mul_f32 v7, v7, v6")
    for r in range(8): A(f"v_mul_f32 v{O+r}, v{O+r}, v7")
    for i in range(4): A(f"v_cvt_pk_bf16_f32 v{P+i}, v{O+2*i}, v{O+2*i+1}")
    A(f"buffer_store_dwordx4 {vr(P,4)}, v2, s[24:27], s34 offen{sc}")
    def tail():
        for (r, b, D, ad, e, tag) in retries:
            l = A.label("at_rl")
            A(f"{r}:\ns_mov_b32 s37, 0x100000\n{l}:\ns_sleep {os.environ.get('SLP', 2)}")
            for x in rd(D, ad, e): A(x)
            A(f"s_sub_u32 s37, s37, 1\ns_waitcnt lgkmcnt(0)\ns_cbranch_scc1 {b}")
            A(f"v_cmp_ne_u32 vcc, {tag}, v{D+9}\ns_cbranch_vccnz {l}\ns_branch {b}")
        C = S[1]; KF = K; VF = V; M = K + 4; QF = Q[1]
        A(f"{fb}:")
        A(f"s_add_u32 s16, s33, {WS_K}\ns_mov_b32 s23, 64\nv_mov_b32 v{M}, 0xff800000")
        l1 = A.label("at_fb1")
        A(f"{l1}:")
        A(f"buffer_load_dwordx4 {vr(KF,4)}, v2, s[24:27], s16 offen{sc}\ns_waitcnt vmcnt(0)")
        A(f"{MFMA} {vr(S[0],16)}, {vr(KF,4)}, {vr(QF,4)}, 0\ns_nop 7\ns_nop 3")
        for i in range(8): A(f"v_max3_f32 v{M}, v{S[0]+2*i}, v{S[0]+2*i+1}, v{M}")
        A(f"s_add_u32 s16, s16, 1024\ns_sub_u32 s23, s23, 1\ns_cmp_lg_u32 s23, 0\ns_cbranch_scc1 {l1}")
        A(f"v_mov_b32 v{M+1}, v{M}\ns_nop 1\nv_permlane32_swap_b32 v{M}, v{M+1}\ns_nop 1\nv_max_f32 v{M}, v{M}, v{M+1}")
        for r in range(16): A(f"v_sub_f32 v{C+r}, 0, v{M}")
        for r in range(16): A(f"v_mov_b32 v{O+r}, 0")
        A(f"s_add_u32 s16, s33, {WS_K}\ns_add_u32 s17, s33, {WS_V}\ns_mov_b32 s23, 64")
        l2 = A.label("at_fb2")
        A(f"{l2}:")
        A(f"buffer_load_dwordx4 {vr(KF,4)}, v2, s[24:27], s16 offen{sc}")
        A("s_mov_b32 exec_lo, 0xffff\ns_mov_b32 exec_hi, 0xffff")
        A(f"buffer_load_dwordx4 {vr(VF,4)}, v3, s[24:27], s17 offen{sc}")
        A(f"buffer_load_dwordx4 {vr(VF+4,4)}, v3, s[24:27], s17 offen offset:512{sc}")
        A("s_mov_b64 exec, -1\ns_waitcnt vmcnt(0)")
        s = S[0]
        A(f"{MFMA} {vr(s,16)}, {vr(KF,4)}, {vr(QF,4)}, {vr(C,16)}\ns_nop 7\ns_nop 3")
        for r in range(16): A(f"v_exp_f32 v{s+r}, v{s+r}")
        A("s_nop 0")
        for i in range(8): A(f"v_cvt_pk_bf16_f32 v{P+i}, v{s+2*i}, v{s+2*i+1}")
        A("s_nop 1")
        A(f"{MFMA} {vr(O,16)}, {vr(VF,4)}, {vr(P,4)}, {vr(O,16)}")
        A(f"{MFMA} {vr(O,16)}, {vr(VF+4,4)}, {vr(P+4,4)}, {vr(O,16)}")
        A("s_nop 7\ns_nop 7")
        A(f"s_add_u32 s16, s16, 1024\ns_add_u32 s17, s17, 1024\ns_sub_u32 s23, s23, 1\ns_cmp_lg_u32 s23, 0\ns_cbranch_scc1 {l2}")
        A(f"s_branch {fin}")
    return tail

def gen_attn(A, name):
    khead(A, name)
    ex = A.label("at_exit")
    A(f"s_cmp_ge_u32 s2, 256\ns_cbranch_scc1 {ex}"); prof_init(A)
    A("s_load_dwordx2 s[10:11], s[0:1], 80\nv_readfirstlane_b32 s3, v0\nv_and_b32 v1, 63, v0\ns_lshr_b32 s3, s3, 6\ns_waitcnt lgkmcnt(0)")
    stamp(A, 5)
    srd(A, 24, 10, WS_SIZE)
    tail = gen_attn_role(A)
    stamp(A, 6); prof_end(A)
    A(f"{ex}:\ns_endpgm")
    tail()
    return 256
```

```python
import sys, math, struct, os
from asmlib import *

NAME = "gated_mix__mha_block__geglu_ffn__prompt"
WS_Q = 0; WS_K = 2 << 20; WS_V = 4 << 20; WS_O = 6 << 20; WS_H = 8 << 20; WS_G = 14 << 20; WS_F = (14 << 20) + 65536
WS_SIZE = 15 << 20
def f32(x): return struct.unpack("<I", struct.pack("<f", x))[0]
LOG2E = 1.4426950408889634
MFMA = "v_mfma_f32_32x32x16_bf16"
ENV = lambda k, d: int(os.environ.get(k, d))

def srd(A, d, b, size):
    A(f"s_mov_b32 s{d}, s{b}\ns_mov_b32 s{d+1}, s{b+1}\ns_mov_b32 s{d+2}, {size}\ns_mov_b32 s{d+3}, 0x20000")

PROF = ENV("PROF", 0)
WS_T = 17 << 20
if PROF: WS_SIZE = 18 << 20
KIDX = [0]
NST = 10
def stamp(A, i, wait=True):
    if PROF:
        A(f"{'s_memrealtime' if PROF == 1 else 's_memtime'} s[{80+2*i}:{81+2*i}]")
        if wait: A("s_waitcnt lgkmcnt(0)")
def prof_end(A, wv="s3"):
    if not PROF: return
    A("s_waitcnt vmcnt(0)")
    stamp(A, NST - 1)
    A(f"s_lshl_b32 s78, s2, 3\ns_add_u32 s78, s78, {wv}\ns_lshl_b32 s78, s78, 6\ns_add_u32 s78, s78, {WS_T + KIDX[0]*256*8*64}")
    A("s_mov_b64 exec, 1\nv_mov_b32 v0, 0")
    for i in range(12): A(f"v_mov_b32 v{4+i}, {'s%d' % (80+2*i) if i < NST else 0}")
    for i in range(3): A(f"buffer_store_dwordx4 v[{4+4*i}:{7+4*i}], v0, s[24:27], s78 offen offset:{16*i}")
def prof_init(A):
    if PROF:
        for i in range(1, NST): A(f"s_mov_b32 s{80+2*i}, 0")
        stamp(A, 0, False)

def khead(A, name):
    A(f".globl {name}\n.p2align 8\n.type {name},@function\n{name}:")

def kdesc(A, name, vgpr, sgpr=102):
    acc = (vgpr + 3) // 4 * 4
    A(".p2align 6")
    A(f".amdhsa_kernel {name}")
    for l in (f".amdhsa_next_free_vgpr {vgpr}", f".amdhsa_next_free_sgpr {sgpr}", f".amdhsa_accum_offset {acc}",
              ".amdhsa_group_segment_fixed_size 0", ".amdhsa_kernarg_size 88", ".amdhsa_user_sgpr_count 2",
              ".amdhsa_user_sgpr_kernarg_segment_ptr 1", ".amdhsa_system_sgpr_workgroup_id_x 1"):
        A(l)
    A(".end_amdhsa_kernel")

class VM:
    def __init__(self, A): self.A = A; self.ops = []
    def op(self, tag, text): self.A(text); self.ops.append(tag)
    def count(self, tag):
        idx = [i for i, t in enumerate(self.ops) if t == tag]
        if not idx: return None
        return len(self.ops) - 1 - idx[-1]
    def wait(self, tag, extra=""):
        n = self.count(tag)
        if n is None:
            if extra: self.A("s_waitcnt " + extra)
            return
        assert n < 64, n
        self.A(f"s_waitcnt vmcnt({n}) {extra}".strip())
        self.ops = self.ops[len(self.ops) - n:] if n else []

def header():
    ref = open("cdna_kernels/" + NAME + ".s.ref").read().split("\n")
    return [l for l in ref if l.startswith(";") and "@launch" not in l and "Override" not in l and "grid=ceil" not in l]

def build(launches):
    A = Asm()
    for l in header(): A(l)
    for (n, g, blk, lds, fn) in launches:
        A(f"; @launch kernel={n} grid=({g},1,1) block=({blk},1,1) lds={lds}")
    A('.amdgcn_target "amdgcn-amd-amdhsa--gfx950"\n.text')
    descs = []
    for (n, g, blk, lds, fn) in launches:
        st = len(A.L)
        v = fn(A, n); KIDX[0] += 1
        errs = check_hazards(A.L[st:])
        for e in errs: print("HAZARD", n, e, file=sys.stderr)
        descs.append((n, v))
    A('.section .rodata,"a"')
    for n, v in descs: kdesc(A, n, v)
    return A.text()
```

```python
from common import *

SLOT = 28672; NSLOT = 5; L_GW = SLOT * NSLOT; L_GX = L_GW + 1024; P12_LDS = L_GX + 512
UPOFF = 12288 + 32
X = 8; ACC = 168; WB = [216, 228]; T = 240
VXA = 136; VW1 = 148; VW2 = 151; VD1 = 154; VD2 = 157

def p12_map(A):
    A("""s_and_b32 s30, s2, 7
    s_lshr_b32 s31, s2, 3
    s_and_b32 s12, s30, 1
    s_lshl_b32 s12, s12, 3
    s_and_b32 s33, s31, 7
    s_add_u32 s12, s12, s33
    s_lshr_b32 s13, s30, 1
    s_lshl_b32 s13, s13, 2
    s_lshr_b32 s34, s31, 3
    s_add_u32 s13, s13, s34
    s_lshl_b32 s34, s34, 1
    s_add_u32 s14, s33, s34
    s_and_b32 s15, s3, 3""")

def gen_p12(A, done, sc="", hooks=None):
    hooks = hooks or {}
    def hook(name, *a):
        if name in hooks: hooks[name](*a)
    p12_map(A)
    h1 = A.label("p12_h1")
    A("s_mov_b32 s62, 43691")
    for i in range(3):
        A(f"""v_add_u32 v2, {64*i}, v1
        v_mul_lo_u32 v3, v2, s62
        v_lshrrev_b32 v{T+i}, 19, v3
        v_mul_u32_u24 v3, 12, v{T+i}
        v_sub_u32 v{T+3+i}, v2, v3""")
    A("s_mul_i32 s63, s15, 3072")
    A(f"s_cmp_ge_u32 s3, 4\ns_cbranch_scc1 {h1}")
    for half in range(2):
        vm = VM(A)
        if half: A(f"{h1}:")
        if half == 0:
            A("s_lshl_b32 s64, s13, 7\ns_lshl_b32 s65, s13, 6\ns_add_u32 s65, s65, 1920\nv_mov_b32 v4, s64\nv_mov_b32 v5, s65")
            for i in range(3):
                A(f"""v_cmp_le_u32 vcc, 8, v{T+3+i}
                v_mul_u32_u24 v2, 3072, v{T+i}
                v_lshl_add_u32 v2, v{T+3+i}, 4, v2
                v_cndmask_b32 v3, v4, v5, vcc
                v_add_u32 v{VD1+i}, v2, v3""")
            A(f"s_mul_i32 s64, s15, {16*3072}\ns_add_u32 s66, s63, 16384\ns_waitcnt lgkmcnt(0)")
            srd(A, 16, 6, 512 * 3072)
        else:
            A(f"""v_lshrrev_b32 v2, 3, v1
            v_lshrrev_b32 v3, 4, v1
            v_and_b32 v4, 7, v1
            v_xor_b32 v3, v3, v4
            v_lshlrev_b32 v3, 4, v3
            v_lshl_add_u32 v{VD1}, v2, 10, v3
            v_xor_b32 v{VD1+1}, 64, v{VD1}
            s_lshl_b32 s64, s12, 17
            s_lshl_b32 s65, s15, 15
            s_add_u32 s64, s64, s65
            s_lshl_b32 s66, s15, 12
            s_lshl_b32 s65, s14, 7
            v_lshl_add_u32 v2, v1, 4, s65
            v_and_b32 v2, 1023, v2
            s_waitcnt lgkmcnt(0)""")
            srd(A, 16, 4, 2048 * 1024)
        def load(c):
            slot = c % NSLOT
            A(f"s_add_u32 s67, s14, {c}\ns_and_b32 s67, s67, 7")
            if c >= 8:
                A(f"s_mul_i32 s67, s67, {64*2752}\ns_add_u32 s67, s67, s65")
                for i in range(3):
                    A(f"s_add_u32 m0, s63, {slot*SLOT + half*UPOFF + i*1024}\ns_nop 0")
                    vm.op(c, f"buffer_load_dwordx4 v{VD2+i}, s[20:23], s67 offen lds")
            elif half == 0:
                A(f"s_mul_i32 s67, s67, {64*3072}\ns_add_u32 s67, s67, s64")
                for i in range(3):
                    A(f"s_add_u32 m0, s66, {slot*SLOT + i*1024}\ns_nop 0")
                    vm.op(c, f"buffer_load_dwordx4 v{VD1+i}, s[16:19], s67 offen lds")
            else:
                A("s_lshl_b32 s67, s67, 7\ns_add_u32 s67, s67, s64")
                for i in range(4):
                    A(f"s_add_u32 m0, s66, {slot*SLOT + i*1024}")
                    A("s_add_u32 s67, s67, 8192" if i else "s_nop 0")
                    vm.op(c, f"buffer_load_dwordx4 v{VD1 + (i&1)}, s[16:19], s67 offen lds")
        load(0)
        if half == 1:
            srd(A, 36, 28, 1024)
            A(f"s_mov_b32 m0, {L_GW}\ns_nop 0")
            vm.op(0, "buffer_load_dwordx4 v2, s[36:39], 0 offen lds")
        load(1)
        srd(A, 20, 8 + 2 * half, 512 * 2752); srd(A, 24, 60, WS_SIZE)
        A(f"""v_and_b32 v5, 31, v1
        v_lshrrev_b32 v6, 5, v1
        v_lshrrev_b32 v7, 1, v5
        v_and_b32 v7, 7, v7
        v_xor_b32 v7, v7, v6
        v_lshlrev_b32 v7, 4, v7
        v_lshl_add_u32 v7, v5, 7, v7
        s_lshl_b32 s68, s15, 12
        v_add_u32 v{VXA}, s68, v7""")
        for ks in range(1, 4): A(f"v_xor_b32 v{VXA+ks}, {32*ks}, v{VXA}")
        load(2)
        for j in (1, 2):
            for ks in range(4): A(f"v_add_u32 v{VXA+4*j+ks}, {j*2*SLOT}, v{VXA+ks}")
        A(f"""v_bfe_u32 v2, v1, 2, 2
        v_lshl_add_u32 v2, v6, 3, v2
        v_mul_u32_u24 v2, 192, v2
        v_and_b32 v3, 3, v1
        v_lshl_add_u32 v2, v3, 3, v2
        v_bfe_u32 v3, v1, 4, 1
        v_lshl_add_u32 v{VW1}, v3, 5, v2
        v_add_u32 v{VW1}, {16384 + 128*half}, v{VW1}
        v_mul_u32_u24 v3, {UPOFF}, v3
        v_add_u32 v{VW2}, v2, v3""")
        if half: A(f"v_add_u32 v{VW2}, 96, v{VW2}")
        load(3)
        for j in (1, 2): A(f"v_add_u32 v{VW1+j}, {j*2*SLOT}, v{VW1}\nv_add_u32 v{VW2+j}, {j*2*SLOT}, v{VW2}")
        for i in range(3):
            A(f"v_mul_u32_u24 v2, 2752, v{T+i}\nv_lshl_add_u32 v{VD2+i}, v{T+3+i}, 4, v2")
        load(4)
        A(f"s_mul_i32 s65, s15, {16*2752}\ns_mul_i32 s68, s13, 192\ns_add_u32 s65, s65, s68")
        if half: A(f"v_lshlrev_b32 v7, 4, v6\nv_add_u32 v7, {L_GW}, v7")
        A("v_lshlrev_b32 v2, 4, v1")
        hook("prologue", half, vm)
        def reads(c, ks):
            slot = c % NSLOT; j = slot // 2; so = (slot % 2) * SLOT
            f = WB[ks & 1]; n = 0
            if c < 8:
                A(f"ds_read_b128 {vr(X+16*c+4*ks,4)}, v{VXA+4*j+ks} offset:{so}"); n += 1
                for t in range(2 - half):
                    for p in range(2):
                        A(f"ds_read_b64_tr_b16 {vr(f+4*t+2*p,2)}, v{VW1+j} offset:{so + (16*ks+4*p)*192 + 64*t}"); n += 1
                if half: A(f"ds_read_b128 {vr(f+4,4)}, v7 offset:{c*128 + ks*32}"); n += 1
            else:
                for t in range(3):
                    for p in range(2):
                        A(f"ds_read_b64_tr_b16 {vr(f+4*t+2*p,2)}, v{VW2+j} offset:{so + (16*ks+4*p)*192 + 32*t}"); n += 1
            return n
        def mf(c, ks):
            f = WB[ks & 1]; x = vr(X + 16 * (c & 7) + 4 * ks, 4)
            for t in range(2 if c < 8 else 3):
                acc = vr(ACC + 16 * t, 16); cc = "0" if ((c & 7) == 0 and ks == 0) else acc
                if c < 8 and half == 1 and t == 0: A(f"{MFMA} {acc}, {x}, {vr(f+4*t,4)}, {cc}")
                else: A(f"{MFMA} {acc}, {vr(f+4*t,4)}, {x}, {cc}")
        vm.wait(0); A("s_barrier"); stamp(A, 1)
        reads(0, 0)
        skip2 = A.label("p12_skip2")
        for c in range(16):
            for ks in range(4):
                if ks < 3:
                    n = reads(c, ks + 1); A(f"s_waitcnt lgkmcnt({n})")
                else:
                    hook("prebar", half, vm, c)
                    if c < 15:
                        vm.wait(c + 1, "lgkmcnt(0)"); A("s_barrier")
                        reads(c + 1, 0)
                    else:
                        A("s_waitcnt lgkmcnt(0)")
                        if "lastbar" in hooks: A("s_barrier")
                mf(c, ks)
                hook("kstep", half, vm, c, ks)
            if c + 5 < 16: load(c + 5)
            if c == 3: stamp(A, 2)
            if c == 7:
                stamp(A, 3)
                A("s_lshl_b32 s69, s12, 2\ns_add_u32 s69, s69, s15\ns_lshl_b32 s70, s69, 10")
                if half == 0:
                    A(f"s_mov_b32 s72, {hex(f32(0.25*LOG2E))}\ns_cmp_lt_u32 s13, 8\ns_cselect_b32 s72, s72, 1.0\ns_mov_b32 s73, s72")
                    A("s_lshl_b32 s71, s13, 18\ns_add_u32 s71, s71, s70")
                    for t in range(2):
                        for r in range(0, 16, 2): A(f"v_pk_mul_f32 {vr(ACC+16*t+r,2)}, {vr(ACC+16*t+r,2)}, s[72:73]")
                        for m in range(2):
                            d = T + 8 * t + 4 * m
                            for i in range(4): A(f"v_cvt_pk_bf16_f32 v{d+i}, v{ACC+16*t+8*m+2*i}, v{ACC+16*t+8*m+2*i+1}")
                            vm.op("st", f"buffer_store_dwordx4 {vr(d,4)}, v2, s[24:27], s71 offen{sc}")
                            if not (t == 1 and m == 1): A("s_add_u32 s71, s71, 65536")
                else:
                    A(f"s_lshl_b32 s71, s13, 17\ns_add_u32 s71, s71, s70\ns_add_u32 s71, s71, {WS_V}")
                    A("""v_and_b32 v3, 15, v1
                    v_lshl_add_u32 v3, v6, 4, v3
                    v_lshlrev_b32 v3, 4, v3
                    v_bfe_u32 v4, v1, 4, 1
                    v_lshl_add_u32 v3, v4, 16, v3""")
                    for m in range(2):
                        d = T + 4 * m
                        for i in range(4): A(f"v_cvt_pk_bf16_f32 v{d+i}, v{ACC+8*m+2*i}, v{ACC+8*m+2*i+1}")
                        vm.op("st", f"buffer_store_dwordx4 {vr(d,4)}, v3, s[24:27], s71 offen offset:{512*m}{sc}")
                    A(f"""v_mul_f32 v4, {hex(f32(LOG2E))}, v{ACC+16}
                    v_exp_f32 v0, v4
                    v_exp_f32 v4, -v4
                    s_lshl_b32 s68, s15, 7
                    v_add_f32 v0, 1.0, v0
                    v_add_f32 v4, 1.0, v4
                    v_lshlrev_b32 v3, 2, v5
                    v_rcp_f32 v4, v4
                    v_min_f32 v0, 0x7f000000, v0
                    v_add_u32 v7, s68, v3
                    s_and_b32 s71, s13, 7
                    s_lshl_b32 s71, s71, 13
                    s_lshl_b32 s70, s69, 7
                    s_add_u32 s71, s71, s70
                    s_add_u32 s71, s71, {WS_G}
                    ds_write_b32 v7, v0 offset:{L_GX - 131072}""".replace("v_add_u32 v7, s68, v3", "s_add_u32 s68, s68, 131072\nv_add_u32 v7, s68, v3"))
                    vm.op("st", f"buffer_store_dword v4, v3, s[24:27], s71 offen{sc}")
                hook("qkv_stored", half, vm)
                A(f"s_waitcnt lgkmcnt(0)")
        stamp(A, 4)
        c0 = 2 * 0.7978845608028654 * LOG2E
        if half == 0:
            A(f"s_lshl_b32 s68, s15, 7\ns_add_u32 s68, s68, {L_GX}\nv_lshl_add_u32 v7, v5, 2, s68\nds_read_b32 v0, v7")
        A(f"s_mov_b32 s72, {hex(f32(-c0*0.044715))}\ns_mov_b32 s73, s72\nv_mov_b32 v4, {hex(f32(-c0))}")
        A(f"s_mul_i32 s70, s69, 86\ns_mul_i32 s71, s13, 6\ns_add_u32 s71, s71, {3*half}\ns_add_u32 s70, s70, s71\ns_lshl_b32 s70, s70, 10\ns_add_u32 s70, s70, {WS_H}")
        A("s_waitcnt lgkmcnt(0)")
        hook("pregeglu", half, vm)
        gd = A.label("p12_gd")
        for t in range(3):
            A(f"s_cmp_ge_u32 s71, {86 - t}\ns_cbranch_scc1 {gd}")
            a = ACC + 16 * t; U = T + 8 * (t & 1)
            P2 = range(0, 8, 2)
            for r in P2: A(f"v_pk_mul_f32 {vr(U+r,2)}, {vr(a+r,2)}, {vr(a+r,2)}")
            for r in P2: A(f"v_pk_fma_f32 {vr(U+r,2)}, {vr(U+r,2)}, s[72:73], v[4:5] op_sel_hi:[1,1,0]")
            for r in P2: A(f"v_pk_mul_f32 {vr(U+r,2)}, {vr(U+r,2)}, {vr(a+r,2)}")
            for r in range(8): A(f"v_exp_f32 v{U+r}, v{U+r}")
            for r in P2: A(f"v_pk_fma_f32 {vr(U+r,2)}, {vr(U+r,2)}, v[0:1], v[0:1] op_sel_hi:[1,0,0]")
            for r in range(8): A(f"v_rcp_f32 v{U+r}, v{U+r}")
            for r in P2: A(f"v_pk_mul_f32 {vr(U+r,2)}, {vr(U+r,2)}, {vr(a+r,2)}")
            for r in P2: A(f"v_pk_mul_f32 {vr(U+r,2)}, {vr(U+r,2)}, {vr(a+8+r,2)}")
            for i in range(4): A(f"v_cvt_pk_bf16_f32 v{a+i}, v{U+2*i}, v{U+2*i+1}")
            vm.op("h", f"buffer_store_dwordx4 {vr(a,4)}, v2, s[24:27], s70 offen offset:{1024*t}{sc}")
        A(f"{gd}:")
        stamp(A, 5)
        hook("end", half, vm)
        if half == 0: A(f"s_branch {done}")

def p12_kernargs(A):
    A("s_load_dwordx4 s[4:7], s[0:1], 0\ns_load_dwordx4 s[8:11], s[0:1], 32\ns_load_dwordx2 s[28:29], s[0:1], 56\ns_load_dwordx2 s[60:61], s[0:1], 80")

def gen_k12(A, name):
    khead(A, name)
    ex = A.label("k12_exit"); dn = A.label("k12_done")
    A(f"s_cmp_ge_u32 s2, 256\ns_cbranch_scc1 {ex}"); prof_init(A)
    p12_kernargs(A)
    A("v_readfirstlane_b32 s3, v0\nv_and_b32 v1, 63, v0\ns_lshr_b32 s3, s3, 6")
    gen_p12(A, dn)
    A(f"{dn}:"); prof_end(A)
    A(f"{ex}:\ns_endpgm")
    return 256
```

```python
from common import *

P4_LDS = 163840; RG = 40960
PH = 168; PO = 8; PACC = 40; PW = [72, 80]; PA = 88
VWD = 1
REG = [1, 2, 3, 0, 1, 2]
NSEQ = 30

def p4_setup(A, lane="v1"):
    A(f"""s_and_b32 s59, s2, 7
    s_lshr_b32 s53, s2, 3
    s_lshl_b32 s52, s59, 2
    s_and_b32 s59, s53, 3
    s_add_u32 s52, s52, s59
    s_lshr_b32 s53, s53, 2
    s_and_b32 s54, s3, 3
    s_lshr_b32 s55, s3, 2
    s_lshl_b32 s52, s52, 1
    s_add_u32 s52, s52, s55
    s_mul_i32 s56, s52, 86
    s_add_u32 s56, s56, s54
    s_lshl_b32 s56, s56, 10
    s_add_u32 s56, s56, {WS_H}
    s_lshl_b32 s57, s54, 14
    s_lshl_b32 s59, s55, 13
    s_add_u32 s57, s57, s59
    s_lshl_b32 s59, s53, 7
    s_add_u32 s57, s57, s59
    s_mul_i32 s58, s54, 10240
    s_lshl_b32 s59, s55, 10
    s_add_u32 s58, s58, s59""")

def p4_vwd(A, t0, t1):
    A(f"""v_lshrrev_b32 v{t0}, 7, v2
    v_lshrrev_b32 v{t1}, 3, v2
    v_and_b32 v{t1}, 32, v{t1}
    v_xor_b32 v{t1}, v{t1}, v2
    v_and_b32 v{t1}, 0x70, v{t1}
    v_lshl_add_u32 v{VWD}, v{t0}, 10, v{t1}""")

def p4_wload(A, vm, n):
    g, i = divmod(n, 5)
    A(f"s_add_u32 m0, s58, {REG[g]*RG + i*2048}")
    if n < 22:
        A(f"s_add_u32 s59, s57, {n*65536}")
        vm.op(("w", g), f"buffer_load_dwordx4 v{VWD}, s[40:43], s59 offen lds")
    else:
        A(f"s_add_u32 s59, s57, {(n-22)*65536}")
        vm.op(("w", g), f"buffer_load_dwordx4 v{VWD}, s[44:47], s59 offen lds")

def p4_hload(A, vm, n, sc=""):
    A(f"s_add_u32 s59, s56, {n*4096}")
    vm.op(("a", n), f"buffer_load_dwordx4 {vr(PH+4*n,4)}, v2, s[24:27], s59 offen{sc}")

def p4_oload(A, vm, sc=""):
    A(f"s_lshl_b32 s59, s52, 5\ns_add_u32 s59, s59, s54\ns_lshl_b32 s59, s59, 10\ns_add_u32 s59, s59, {WS_O}")
    for j in range(8):
        vm.op(("a", 22 + j), f"buffer_load_dwordx4 {vr(PO+4*j,4)}, v2, s[24:27], s59 offen{sc}")
        if j < 7: A("s_add_u32 s59, s59, 4096")

def p4_addr(A):
    t = PW[0]
    A(f"""v_lshrrev_b32 v{t}, 4, v2
    v_lshrrev_b32 v{t+1}, 5, v{t}
    v_bfe_u32 v{t+2}, v{t}, 2, 2
    v_lshl_add_u32 v{t+1}, v{t+1}, 2, v{t+2}
    v_lshlrev_b32 v{t+1}, 7, v{t+1}
    v_and_b32 v{t+2}, 1, v{t}
    v_lshl_add_u32 v{t+1}, v{t+2}, 6, v{t+1}
    v_and_b32 v{t+2}, 16, v{t}
    v_add_u32 v{t+1}, v{t+2}, v{t+1}
    v_and_b32 v{t+2}, 10, v{t}
    v_lshl_add_u32 v{t+1}, v{t+2}, 2, v{t+1}
    s_lshl_b32 s59, s54, 4
    v_xor_b32 v{t+1}, s59, v{t+1}
    s_mul_i32 s59, s54, 10240
    v_add_u32 v{PA}, s59, v{t+1}
    v_xor_b32 v{PA+1}, 32, v{PA}
    v_add_u32 v{PA+2}, {2*RG}, v{PA}
    v_add_u32 v{PA+3}, {2*RG}, v{PA+1}""")

def gen_p4(A, vm, hooks=None):
    hooks = hooks or {}
    def hook(name, *a):
        if name in hooks: hooks[name](*a)
    def reads(n):
        g, i = divmod(n, 5); r = REG[g]; f = PW[n & 1]
        for j in range(2):
            for p in range(2):
                A(f"ds_read_b64_tr_b16 {vr(f+4*j+2*p,2)}, v{PA+2*(r>>1)+j} offset:{(r&1)*RG + i*2048 + p*1024}")
    def mf(n):
        f = PW[n & 1]; b = vr(PH + 4 * n, 4) if n < 22 else vr(PO + 4 * (n - 22), 4)
        sk = None
        if n == 21:
            sk = A.label("p4_sk"); A(f"s_cmp_ge_u32 s54, 2\ns_cbranch_scc1 {sk}")
        for j in range(2):
            a = vr(PACC + 16 * j, 16)
            A(f"{MFMA} {a}, {vr(f+4*j,4)}, {b}, {'0' if n == 0 else a}")
        if sk: A(f"{sk}:")
    vm.wait(("w", 0)); A("s_barrier"); stamp(A, 6)
    reads(0)
    hook("bar", 0)
    for n in range(NSEQ):
        g, i = divmod(n, 5)
        if n == NSEQ - 1: A("s_waitcnt lgkmcnt(0)")
        elif i < 4:
            reads(n + 1); A("s_waitcnt lgkmcnt(4)")
        else:
            vm.wait(("w", g + 1), "lgkmcnt(0)"); A("s_barrier")
            reads(n + 1)
        hook("pre", n)
        vm.wait(("a", n))
        mf(n)
        if i == 4 and g < 2:
            for m in range(5): p4_wload(A, vm, 5 * (g + 4) + m)
        if i == 4: hook("bar", g + 1)
    stamp(A, 7)
    A(f"s_mul_i32 s57, s55, {3*RG}")
    for c in range(1, 4):
        A(f"s_xor_b32 s59, s54, {c}\ns_mul_i32 s59, s59, 6144\ns_add_u32 s59, s59, s57\nv_add_u32 v{PA+c}, s59, v2")
    A(f"s_mul_i32 s59, s54, 6144\ns_add_u32 s59, s59, s57\nv_add_u32 v{PA}, s59, v2")
    for c in (1, 2, 3):
        for k in range(2):
            A(f"ds_write_b128 v{PA+c}, {vr(PACC+8*c+4*k,4)} offset:{(c-1)*2048 + k*1024}")
    t = PW[0]
    A(f"""v_and_b32 v{t}, 0x1f0, v2
    v_lshlrev_b32 v{t}, 6, v{t}
    v_lshrrev_b32 v{t+1}, 3, v2
    v_and_b32 v{t+1}, 64, v{t+1}
    v_add_u32 v{t}, v{t}, v{t+1}
    s_lshl_b32 s59, s52, 15
    s_lshl_b32 s57, s53, 7
    s_add_u32 s59, s59, s57
    s_lshl_b32 s57, s54, 4
    s_add_u32 s59, s59, s57
    s_waitcnt lgkmcnt(0)
    s_barrier""")
    for c in (1, 2, 3):
        for k in range(2):
            A(f"ds_read_b128 {vr(PACC+8*c+4*k,4)}, v{PA} offset:{(c-1)*2048 + k*1024}")
    for c in (1, 2, 3):
        A(f"s_waitcnt lgkmcnt({6-2*c})")
        for r in range(0, 8, 2): A(f"v_pk_add_f32 {vr(PACC+r,2)}, {vr(PACC+r,2)}, {vr(PACC+8*c+r,2)}")
    for i in range(4): A(f"v_cvt_pk_bf16_f32 v{PACC+8+i}, v{PACC+2*i}, v{PACC+2*i+1}")
    A(f"buffer_store_dwordx4 {vr(PACC+8,4)}, v{t}, s[48:51], s59 offen")
    stamp(A, 8)

def gen_k4(A, name):
    khead(A, name)
    ex = A.label("p4_exit")
    A(f"s_cmp_ge_u32 s2, 256\ns_cbranch_scc1 {ex}"); prof_init(A)
    A("s_load_dwordx2 s[4:5], s[0:1], 48\ns_load_dwordx2 s[6:7], s[0:1], 16\ns_load_dwordx2 s[8:9], s[0:1], 64\ns_load_dwordx2 s[10:11], s[0:1], 80")
    A("v_readfirstlane_b32 s3, v0\nv_and_b32 v2, 63, v0\ns_lshr_b32 s3, s3, 6\nv_lshlrev_b32 v2, 4, v2")
    p4_setup(A); p4_vwd(A, 3, 4)
    A("s_waitcnt lgkmcnt(0)")
    srd(A, 40, 4, 1376 * 1024); srd(A, 24, 10, WS_SIZE)
    vm = VM(A)
    for g in range(4):
        for m in range(5): p4_wload(A, vm, 5 * g + m)
        for m in range(5): p4_hload(A, vm, 5 * g + m)
        if g == 0: srd(A, 44, 6, 512 * 1024); srd(A, 48, 8, 2048 * 1024); p4_addr(A)
    p4_hload(A, vm, 20); p4_hload(A, vm, 21); p4_oload(A, vm)
    stamp(A, 1)
    gen_p4(A, vm)
    prof_end(A)
    A(f"{ex}:\ns_endpgm")
    return 256
```

```python
from common import *
from p12 import *
from attn import *
from p4 import *
if __name__ == "__main__":
    L = [("k12_kernel", 256, 512, P12_LDS, gen_k12),
         ("attn_kernel", 256, 512, AT_LDS, gen_attn),
         ("p4_kernel", 256, 512, P4_LDS, gen_k4)]
    out = sys.argv[1] if len(sys.argv) > 1 else "cdna_kernels/" + NAME + ".s"
    open(out, "w").write(build(L))
```
